```python
import torch

def _softmax(x, axis=-1):
    return torch.softmax(x, dim=axis)
def _gelu(x):
    return torch.nn.functional.gelu(x, approximate="tanh")
def _silu(x):
    return torch.nn.functional.silu(x)
def _sigmoid(x):
    return torch.sigmoid(x)
def _layernorm(x, axis=-1, eps=1e-5):
    m = x.mean(dim=axis, keepdim=True)
    v = x.var(dim=axis, keepdim=True, unbiased=False)
    return (x - m) / torch.sqrt(v + eps)
def _scatter_add(tgt, idx, src, axis=0):
    return tgt.clone().index_add_(axis, idx, src)
def _segment_sum(src, seg, n):
    out = torch.zeros((n,) + src.shape[1:], dtype=src.dtype)
    return out.index_add_(0, seg, src)
def _pad(x, pw):
    flat = tuple(v for pair in reversed(pw) for v in pair)
    return torch.nn.functional.pad(x, flat)

kernel_name = 'sequential_preLN__compressed_kv_cla__dense_activation_squared_relu__prompt'

def setup_inputs():

    _w = (lambda a: (lambda t: t.to(torch.bfloat16) if t.is_floating_point() else t)(torch.as_tensor(a)))
    def _A_setup():
        B, H, Sq, Sk, D, M = 1, 32, 2048, 2048, 128, 576
        Dc = 4 * D
        return {
            "x": _w((lambda *s: torch.randn(*s, dtype=torch.bfloat16) * 0.05)(B, Sq, M)),
            "c_kv": _w((lambda *s: torch.randn(*s, dtype=torch.bfloat16) * 0.4)(B, Sk, Dc)),
            "w_q": _w((lambda *s: torch.randn(*s, dtype=torch.bfloat16) * 3.2)(M, H, D) * (M ** -0.5)),
            "w_uk": _w((lambda *s: torch.randn(*s, dtype=torch.bfloat16) * 3.2)(Dc, H, D) * (Dc ** -0.5)),
            "w_uv": _w((lambda *s: torch.randn(*s, dtype=torch.bfloat16) * 0.4)(Dc, H, D) * (Dc ** -0.5)),
            "w_o": _w((lambda *s: torch.randn(*s, dtype=torch.bfloat16) * 0.4)(H, D, M) * ((H * D) ** -0.5)),
        }
    _A_in = _A_setup()

    def _B_setup():
        B, S, D, F = 1, 2048, 576, 4608
        return {
            "x": _w((lambda *s: torch.randn(*s, dtype=torch.bfloat16) * 0.05)(B, S, D)),
            "w1": _w((lambda *s: torch.randn(*s, dtype=torch.bfloat16) * 0.05)(D, F)),
            "b1": _w((lambda *s: torch.randn(*s, dtype=torch.bfloat16) * 0.4)(F)),
            "w2": _w((lambda *s: torch.randn(*s, dtype=torch.bfloat16) * 0.05)(F, D)),
            "b2": _w((lambda *s: torch.randn(*s, dtype=torch.bfloat16) * 3.2)(D)),
        }
    _B_in = _B_setup()

    return {
        "A_x": _A_in["x"],
        "A_c_kv": _A_in["c_kv"],
        "A_w_q": _A_in["w_q"],
        "A_w_uk": _A_in["w_uk"],
        "A_w_uv": _A_in["w_uv"],
        "A_w_o": _A_in["w_o"],
        "B_x": _B_in["x"],
        "B_w1": _B_in["w1"],
        "B_b1": _B_in["b1"],
        "B_w2": _B_in["w2"],
        "B_b2": _B_in["b2"],
    }

def reference(A_x, A_c_kv, A_w_q, A_w_uk, A_w_uv, A_w_o, B_x, B_w1, B_b1, B_w2, B_b2):
    def _A_ref(x, c_kv, w_q, w_uk, w_uv, w_o):
        B, Sq, M = x.shape[0], x.shape[1], x.shape[2]
        Sk = c_kv.shape[1]
        H, D = w_q.shape[1], w_q.shape[2]
        q = torch.einsum("bqm,mhd->bhqd", x, w_q)
        k = torch.einsum("bkc,chd->bhkd", c_kv, w_uk)
        v = torch.einsum("bkc,chd->bhkd", c_kv, w_uv)
        scores = torch.einsum("bhqd,bhkd->bhqk", q, k) * (D ** -0.5)
        off = Sk - Sq
        qi = torch.arange(Sq)[:, None]
        kj = torch.arange(Sk)[None, :]
        cmask = kj <= (qi + off)
        scores = torch.where(cmask[None, None], scores, -1e9)
        p = _softmax(scores, axis=-1)
        ctx = torch.einsum("bhqk,bhkd->bhqd", p, v)
        return torch.einsum("bhqd,hdm->bqm", ctx, w_o)

    def _B_ref(x, w1, b1, w2, b2):
        h = torch.einsum("bsd,df->bsf", x, w1) + b1
        zero = torch.zeros_like(h)
        r = torch.where(h > zero, h, zero)
        h = r * r
        out = torch.einsum("bsf,fd->bsd", h, w2) + b2
        return out

    x = A_x
    h = x + _A_ref(_layernorm(x, axis=-1), A_c_kv, A_w_q, A_w_uk, A_w_uv, A_w_o)
    h2 = h + _B_ref(_layernorm(h, axis=-1), B_w1, B_b1, B_w2, B_b2)
    return h2
```

```python
from gen_common import *
import struct

def f2u(x):
    return struct.unpack("<I", struct.pack("<f", x))[0]

KBASE = 0
VBASE = 65536
SLOT = 16384

class LdsQ:
    def __init__(self): self.issued = 0; self.done = 0
    def issue(self, n=1):
        self.issued += n; return self.issued
    def need(self, out, seq):
        if seq > self.done:
            n = min(self.issued - seq, 15)
            out.append(f"  s_waitcnt lgkmcnt({n})")
            self.done = self.issued - n
    def drain(self): self.done = self.issued

def gen_attn(name):
    k = Kern(name); k.uses(56); k.usev(256)
    lend = name + "_end"
    e = k.e
    vl = 1; vt = 2; vt2 = 3; vt3 = 4
    vKA = list(range(5, 13)); vVA = list(range(13, 17)); vDK = [17, 18]; vDV = [19, 20]
    vm = 21; vsum = 22; vmk = 23; vneg = 24; va_ = 25; vb_ = 26; vmn = 27; vd = 28; vout = 29
    O = 32; S = [96, 128]; Q = 160; KR = 192; VR = 208; NVR = 6
    XN = 96; AR = 240
    SC = 30; STH = 31
    e("s_cmp_ge_u32 s2, 256")
    e(f"s_cbranch_scc1 {lend}")
    e(f"v_and_b32 v{vl}, 63, v0")
    e(f"v_lshrrev_b32 v{vt}, 6, v0")
    e(f"s_load_dwordx2 s[40:41], s[0:1], {KA['ws']}")
    e(f"s_load_dwordx2 s[42:43], s[0:1], {KA['wq']}")
    e(f"v_readfirstlane_b32 s20, v{vt}")
    e("s_and_b32 s44, s2, 7")
    e("s_lshr_b32 s45, s2, 3")
    e("s_and_b32 s46, s45, 3")
    e("s_lshl_b32 s44, s44, 2")
    e("s_add_u32 s44, s44, s46")
    e("s_lshr_b32 s45, s45, 2")
    e("s_lshl_b32 s21, s20, 10")
    e("s_sub_u32 s46, 15, s45")
    e("s_lshl_b32 s46, s46, 7")
    e("s_lshl_b32 s47, s20, 5")
    e("s_add_u32 s46, s46, s47")
    e("s_lshl_b32 s47, s45, 7")
    e("s_sub_u32 s48, 7, s20")
    e("s_lshl_b32 s48, s48, 5")
    e("s_add_u32 s47, s47, s48")
    e("s_cmp_lt_u32 s20, 4")
    e("s_cselect_b32 s22, s46, s47")
    e("s_lshr_b32 s23, s22, 6")
    e("s_lshl_b32 s24, s45, 1")
    e("s_sub_u32 s24, 32, s24")
    e("s_lshl_b32 s44, s44, 8")
    e(f"s_mov_b32 s{SC}, {f2u(128 ** -0.5 * 1.4426950408889634):#x}")
    e(f"s_mov_b32 s{STH}, {f2u(8.0):#x}")
    e("s_waitcnt lgkmcnt(0)")
    e(f"s_sub_u32 s47, {SZ_KV}, s44")
    mk_srd(k, 4, 40, off_sgpr=44, off_imm=WS['k'], size_sgpr=47)
    mk_srd(k, 8, 40, off_sgpr=44, off_imm=WS['v'], size_sgpr=47)
    e(f"s_sub_u32 s47, {576*8192}, s44")
    mk_srd(k, 12, 42, off_sgpr=44, size_sgpr=47)
    e("s_mul_i32 s46, s22, 1152")
    if WS['xn']:
        mk_srd(k, 16, 40, off_sgpr=46, off_imm=WS['xn'], size=32 * 1152)
    else:
        mk_srd(k, 16, 40, off_sgpr=46, size=32 * 1152)
    e(f"v_and_b32 v{vt}, 31, v{vl}")
    e(f"v_mul_u32_u24 v{vt}, 1152, v{vt}")
    e(f"v_lshrrev_b32 v{vt2}, 5, v{vl}")
    e(f"v_lshl_add_u32 v{vt}, v{vt2}, 4, v{vt}")
    vm_ops = []
    def vm_issue(tag): vm_ops.append(tag)
    def vm_wait_for(tag):
        idx = max(i for i, t in enumerate(vm_ops) if t == tag)
        return len(vm_ops) - 1 - idx
    for tau in range(36):
        e(f"buffer_load_dwordx4 {vr(XN+4*tau,4)}, v{vt}, s[16:19], 0 offen offset:{32*tau}")
        vm_issue("xn")
    e(f"v_lshrrev_b32 v{vt}, 4, v{vl}")
    e("s_lshl_b32 s46, s20, 2")
    e(f"v_add_u32 v{vt2}, s46, v{vt}")
    e(f"v_xor_b32 v{vt3}, v{vt2}, v{vl}")
    e(f"v_and_b32 v{vt3}, 15, v{vt3}")
    e(f"v_lshlrev_b32 v{vt3}, 4, v{vt3}")
    e(f"v_lshl_add_u32 v{vDK[0]}, v{vt2}, 13, v{vt3}")
    e(f"v_add_u32 v{vDK[1]}, 0x40000, v{vDK[0]}")
    e(f"v_lshlrev_b32 v{vt3}, 2, v{vt}")
    e(f"v_xor_b32 v{vt3}, v{vt3}, v{vl}")
    e(f"v_and_b32 v{vt3}, 15, v{vt3}")
    e(f"v_lshlrev_b32 v{vt3}, 4, v{vt3}")
    e(f"v_lshl_add_u32 v{vDV[0]}, v{vt2}, 13, v{vt3}")
    e(f"v_add_u32 v{vDV[1]}, 0x40000, v{vDV[0]}")
    def dma(kind, ldsbase, soff, out=None):
        o = []
        vv = vDK if kind == "K" else vDV
        srd = {"K": "s[4:7]", "V": "s[8:11]", "W": "s[12:15]"}[kind]
        for j in range(2):
            o.append([f"  s_add_u32 m0, s21, {ldsbase + 8192*j:#x}", "  s_nop 0",
                      f"  buffer_load_dwordx4 v{vv[j]}, {srd}, {soff} offen lds"])
        return o
    WSL = [KBASE + 2 * SLOT, KBASE + 3 * SLOT, VBASE + 2 * SLOT, VBASE + 3 * SLOT]
    def issue_static(kind, tile, ldsbase):
        e(f"s_mov_b32 s46, {tile*64*8192:#x}")
        for g in dma(kind, ldsbase, "s46"):
            k.L.extend(g); vm_issue((kind, tile))
    for u in range(4):
        issue_static("W", u, WSL[u])
    for kind, tile in [("K", 0), ("V", 0), ("K", 1), ("V", 1)]:
        issue_static(kind, tile, (KBASE if kind == "K" else VBASE) + tile * SLOT)
    vr_ = vt; vh = vt2
    e(f"v_bfe_u32 v{vr_}, v{vl}, 2, 2")
    e(f"v_lshrrev_b32 v{vh}, 5, v{vl}")
    e(f"v_bfe_u32 v{vt3}, v{vl}, 4, 1")
    e(f"v_lshlrev_b32 v{vt3}, 5, v{vt3}")
    e(f"v_and_b32 v{va_}, 3, v{vl}")
    e(f"v_lshl_add_u32 v{vt3}, v{va_}, 3, v{vt3}")
    e(f"v_lshl_add_u32 v{va_}, v{vh}, 3, v{vr_}")
    e(f"v_lshl_add_u32 v{va_}, v{va_}, 8, v{vt3}")
    e(f"v_lshl_add_u32 v{vb_}, v{vh}, 2, v{vr_}")
    e(f"v_lshl_add_u32 v{vb_}, v{vb_}, 8, v{vt3}")
    for T in range(4):
        e(f"v_xor_b32 v{vt3}, {T}, v{vr_}")
        e(f"v_lshl_add_u32 v{vd}, v{vt3}, 6, v{va_}")
        e(f"v_add_u32 v{vKA[T]}, {WSL[0]:#x}, v{vd}")
        e(f"v_add_u32 v{vKA[4+T]}, {WSL[2]:#x}, v{vd}")
        e(f"v_lshl_add_u32 v{vd}, v{vt3}, 6, v{vb_}")
        e(f"v_add_u32 v{vVA[T]}, {VBASE:#x}, v{vd}")
    L = k.L
    lq = LdsQ()
    NAR = 4
    fr = [(u, tq, T) for u in range(9) for tq in range(4) for T in range(4)]
    def w_reads(n):
        u, tq, T = fr[n]
        base = vKA[T] if (u % 4) < 2 else vKA[4 + T]
        off = (u % 2) * SLOT + tq * 16 * 256
        r = AR + (n % NAR) * 4
        return [f"  ds_read_b64_tr_b16 {vr(r,2)}, v{base} offset:{off}",
                f"  ds_read_b64_tr_b16 {vr(r+2,2)}, v{base} offset:{off+1024}"]
    seq = {}
    LAW = 3
    e(f"s_waitcnt vmcnt({vm_wait_for(('W',0))})")
    e("s_barrier")
    for n in range(LAW):
        L.extend(w_reads(n)); seq[n] = lq.issue(2)
    started = set()
    for n, (u, tq, T) in enumerate(fr):
        nn = n + LAW
        if nn < len(fr):
            if fr[nn][0] != fr[nn - 1][0]:
                un = fr[nn][0]
                e(f"s_waitcnt vmcnt({vm_wait_for(('W',un))}) lgkmcnt(0)")
                lq.drain()
                e("s_barrier")
                if un + 3 < 9:
                    issue_static("W", un + 3, WSL[(un + 3) % 4])
        lq.need(L, seq[n])
        a = O + 16 * T
        c = vr(a, 16) if T in started else "0"
        started.add(T)
        e(f"v_mfma_f32_32x32x16_bf16 {vr(a,16)}, {vr(AR+(n%NAR)*4,4)}, {vr(XN+4*(4*u+tq),4)}, {c}")
        if nn < len(fr):
            L.extend(w_reads(nn)); seq[nn] = lq.issue(2)
    e(f"s_waitcnt vmcnt({vm_wait_for(('K',0))}) lgkmcnt(0)")
    e("s_barrier")
    for kind, tile in [("K", 2), ("V", 2), ("K", 3)]:
        issue_static(kind, tile, (KBASE if kind == "K" else VBASE) + tile * SLOT)
    e(f"v_and_b32 v{vt}, 31, v{vl}")
    e(f"v_lshlrev_b32 v{vt}, 8, v{vt}")
    e(f"v_lshrrev_b32 v{vt2}, 5, v{vl}")
    e(f"v_xor_b32 v{vt2}, v{vt2}, v{vl}")
    e(f"v_and_b32 v{vt2}, 15, v{vt2}")
    for c in range(8):
        e(f"v_xor_b32 v{vt3}, {2*c}, v{vt2}")
        e(f"v_lshl_add_u32 v{vKA[c]}, v{vt3}, 4, v{vt}")
    e(f"v_and_b32 v{vmk}, 31, v{vl}")
    e("s_and_b32 s46, s22, 32")
    e(f"v_add_u32 v{vmk}, s46, v{vmk}")
    e(f"v_lshrrev_b32 v{vt2}, 5, v{vl}")
    e(f"v_lshlrev_b32 v{vt2}, 2, v{vt2}")
    e(f"v_sub_u32 v{vmk}, v{vmk}, v{vt2}")
    e(f"v_mov_b32 v{vneg}, 0xff800000")
    e("s_nop 7")
    for T in range(4):
        for ee in range(2):
            d = Q + (2 * T + ee) * 4; a = O + 16 * T + 4 * ee
            e(f"v_cvt_pk_bf16_f32 v{d}, v{a}, v{a+1}")
            e(f"v_cvt_pk_bf16_f32 v{d+1}, v{a+2}, v{a+3}")
            e(f"v_cvt_pk_bf16_f32 v{d+2}, v{a+8}, v{a+9}")
            e(f"v_cvt_pk_bf16_f32 v{d+3}, v{a+10}, v{a+11}")
    for i in range(64):
        e(f"v_mov_b32 v{O+i}, 0")
    e(f"v_mov_b32 v{vsum}, 0")
    e(f"v_mov_b32 v{vm}, 0xff800000")

    def k_read(slot, n):
        sub, c = n // 8, n % 8
        return f"  ds_read_b128 {vr(KR+(n%4)*4,4)}, v{vKA[c]} offset:{KBASE + slot*SLOT + sub*8192}"
    def qk_mfma(sb, n):
        sub, c = n // 8, n % 8
        a = S[sb] + 16 * sub
        cc = vr(a, 16) if c else "0"
        return f"  v_mfma_f32_32x32x16_bf16 {vr(a,16)}, {vr(KR+(n%4)*4,4)}, {vr(Q+4*c,4)}, {cc}"
    def v_reads(slot, m):
        ks, T = m // 4, m % 4
        r = VR + (m % NVR) * 4
        off = slot * SLOT + ks * 16 * 256
        return [f"  ds_read_b64_tr_b16 {vr(r,2)}, v{vVA[T]} offset:{off}",
                f"  ds_read_b64_tr_b16 {vr(r+2,2)}, v{vVA[T]} offset:{off+2048}"]
    def pv_mfma(sb, m):
        ks, T = m // 4, m % 4
        a = O + 16 * T
        return f"  v_mfma_f32_32x32x16_bf16 {vr(a,16)}, {vr(VR+(m%NVR)*4,4)}, {vr(S[sb]+8*ks,4)}, {vr(a,16)}"
    def exp_ops(sb, ks):
        b = S[sb] + 8 * ks
        ops = []
        pend = []
        for j in range(4):
            x, y = b + 2 * j, b + 2 * j + 1
            ops.append((1, f"  v_fma_f32 v{x}, v{x}, s{SC}, -v{vm}"))
            ops.append((1, f"  v_fma_f32 v{y}, v{y}, s{SC}, -v{vm}"))
            ops.extend(pend)
            ops.append((2, f"  v_exp_f32 v{x}, v{x}"))
            ops.append((2, f"  v_exp_f32 v{y}, v{y}"))
            pend = [(1, f"  v_add_f32 v{vsum}, v{vsum}, v{x}"),
                    (1, f"  v_add_f32 v{vsum}, v{vsum}, v{y}"),
                    (1, f"  v_cvt_pk_bf16_f32 v{b+j}, v{x}, v{y}")]
        ops.append((1, "  s_nop 0"))
        ops.extend(pend)
        return ops
    def max_ops(sb):
        ops = []
        for sub, acc in ((0, va_), (1, vb_)):
            b = S[sb] + 16 * sub
            ops.append((1, f"  v_max3_f32 v{acc}, v{b}, v{b+1}, v{b+2}"))
            for j in range(3, 15, 2):
                ops.append((1, f"  v_max3_f32 v{acc}, v{acc}, v{b+j}, v{b+j+1}"))
            ops.append((1, f"  v_max_f32 v{acc}, v{acc}, v{b+15}"))
        ops.append((1, f"  v_max_f32 v{va_}, v{va_}, v{vb_}"))
        ops.append((1, f"  v_mov_b32 v{vb_}, v{va_}"))
        ops.append((1, "  s_nop 1"))
        ops.append((1, f"  v_permlane32_swap_b32 v{va_}, v{vb_}"))
        ops.append((1, "  s_nop 0"))
        ops.append((1, f"  v_max_f32 v{va_}, v{va_}, v{vb_}"))
        ops.append((1, f"  v_mul_f32 v{va_}, s{SC}, v{va_}"))
        ops.append((1, f"  v_max_f32 v{vmn}, v{vm}, v{va_}"))
        ops.append((1, f"  v_sub_f32 v{vd}, v{vmn}, v{vm}"))
        ops.append((1, f"  v_cmp_lt_f32 vcc, s{STH}, v{vd}"))
        return ops
    def mask_block(sb):
        o = ["  s_nop 7", "  s_nop 3"]
        items = []
        for sub in range(2):
            for i in range(16):
                g, r = i >> 2, i & 3
                items.append((S[sb] + 16 * sub + i, 32 * sub + 8 * g + r))
        pairs = [32, 34, 36]
        n = len(items)
        for i in range(n + 2):
            if i < n:
                o.append(f"  v_cmp_gt_i32 s[{pairs[i%3]}:{pairs[i%3]+1}], {items[i][1]}, v{vmk}")
            if i >= 2:
                reg = items[i - 2][0]; p = pairs[(i - 2) % 3]
                if i >= n: o.append("  s_nop 0")
                o.append(f"  v_cndmask_b32 v{reg}, v{reg}, v{vneg}, s[{p}:{p+1}]")
        return o
    def rare_block():
        lab = "2"
        o = [f"  s_cbranch_vccz 2f", "  s_nop 7", "  s_nop 3",
             f"  v_sub_f32 v{vd}, v{vm}, v{vmn}", f"  v_exp_f32 v{vd}, v{vd}", f"  v_mov_b32 v{vm}, v{vmn}"]
        for i in range(64):
            o.append(f"  v_mul_f32 v{O+i}, v{O+i}, v{vd}")
        o.append(f"  v_mul_f32 v{vsum}, v{vsum}, v{vd}")
        o.append("  s_nop 1")
        o.append("2:")
        return o
    def barrier_block(lq, out, dyn_s):
        out.append("  s_add_u32 s46, s25, 3")
        out.append("  s_cmp_lt_u32 s46, s24")
        out.append("  s_cbranch_scc1 3f")
        out.append("  s_waitcnt vmcnt(0)")
        out.append("3:")
        out.append("  s_waitcnt vmcnt(8) lgkmcnt(0)")
        out.append("  s_barrier")
        lq.drain()
    def dma_after(sslot):
        g = []
        kk = dma("K", KBASE + sslot * SLOT, "s26")
        vv = dma("V", VBASE + ((sslot + 3) % 4) * SLOT, "s27")
        g.append(["  s_add_u32 s46, s25, 4", "  s_cmp_lt_u32 s46, s24", "  s_cbranch_scc0 4f"] + kk[0] + kk[1] + ["4:"])
        g.append(["  s_add_u32 s46, s25, 3", "  s_cmp_lt_u32 s46, s24", "  s_cbranch_scc0 5f"] + vv[0] + vv[1] + ["5:",
                  "  s_add_u32 s26, s26, 0x80000", "  s_add_u32 s27, s27, 0x80000"])
        return g

    lq = LdsQ()
    seq = {}
    for n in range(4):
        L.append(k_read(0, n)); seq[n] = lq.issue()
    for n in range(16):
        lq.need(L, seq[n])
        L.append(qk_mfma(0, n))
        if n + 4 < 16:
            L.append(k_read(0, n + 4)); seq[n + 4] = lq.issue()
    e("s_cmp_eq_u32 s23, 0")
    e("s_cbranch_scc0 6f")
    L.extend(mask_block(0))
    k.lab("6")
    e("s_nop 7"); e("s_nop 3")
    for c_, ins in max_ops(0):
        L.append(ins)
    e(f"v_mov_b32 v{vm}, v{vmn}")
    e("s_mov_b32 s25, 0")
    e(f"s_mov_b32 s26, {4*64*8192:#x}")
    e(f"s_mov_b32 s27, {3*64*8192:#x}")
    barrier_block(lq, L, None)
    for g in dma_after(0):
        L.extend(g)
    for n in range(4):
        L.append(k_read(1, n))
    lfin = [f"{name}_fin{p}" for p in range(4)]
    lbody = [f"{name}_body{p}" for p in range(4)]
    e("s_cmp_eq_u32 s23, 0")
    e(f"s_cbranch_scc1 {lfin[0]}")

    RATE = 5.6
    for p in range(4):
        k.lab(lbody[p])
        sb = p % 2; sn = (p + 1) % 2
        kslot = (p + 1) % 4; vslot = p
        lq = LdsQ()
        kseq = {}; vseq = {}
        for n in range(4): kseq[n] = lq.issue()
        valu = []
        for ks in range(4): valu += exp_ops(sb, ks)
        nexp = len(valu)
        mops = max_ops(sn)
        vi = 0; spent = 0.0
        post = []
        for g in range(32):
            if g < 16:
                lq.need(L, kseq[g]); L.append(qk_mfma(sn, g))
            else:
                lq.need(L, vseq[g - 16]); L.append(pv_mfma(sb, g - 16))
            if g + 4 < 16:
                L.append(k_read(kslot, g + 4)); kseq[g + 4] = lq.issue()
            m = g - 10
            if 0 <= m < 16:
                L.extend(v_reads(vslot, m)); vseq[m] = lq.issue(2)
            if g == 17:
                e(f"s_add_u32 s46, s25, 1")
                e("s_cmp_eq_u32 s46, s23")
                e("s_cbranch_scc0 6f")
                L.extend(mask_block(sn))
                k.lab("6")
                valu += mops
            if g == 28:
                e("s_add_u32 s25, s25, 1")
                barrier_block(lq, L, None)
                for n in range(4):
                    L.append(k_read((p + 2) % 4, n)); lq.issue()
                post = dma_after((p + 1) % 4)
            elif post:
                L.extend(post.pop(0))
            target = RATE * (g + 1)
            while vi < len(valu) and (spent < target or g == 31):
                c_, ins = valu[vi]; vi += 1
                L.append(ins); spent += c_
        assert vi == len(valu) and not post
        L.extend(rare_block())
        e("s_cmp_eq_u32 s25, s23")
        e(f"s_cbranch_scc1 {lfin[(p+1)%4]}")
        if p == 3:
            e(f"s_branch {lbody[0]}")
    lload = name + "_loader"
    for p in range(4):
        k.lab(lfin[p])
        sb = p % 2; vslot = p
        lq = LdsQ(); lq.issue(4)
        vseq = {}
        for m in range(NVR):
            L.extend(v_reads(vslot, m)); vseq[m] = lq.issue(2)
        for c_, ins in exp_ops(sb, 0): L.append(ins)
        e("s_nop 1")
        rest = []
        for ks in range(1, 4): rest += exp_ops(sb, ks)
        vi = 0; spent = 0.0
        for m in range(16):
            lq.need(L, vseq[m]); L.append(pv_mfma(sb, m))
            if m + NVR < 16:
                L.extend(v_reads(vslot, m + NVR)); vseq[m + NVR] = lq.issue(2)
            target = 37.0 * (m // 4 + 1) if (m % 4) == 2 else 12.5 * (m + 1 - m // 4 * 4) + 37.0 * (m // 4)
            while vi < len(rest) and spent < target:
                c_, ins = rest[vi]; vi += 1
                L.append(ins); spent += c_
            if m % 4 == 3: e("s_nop 1")
        assert vi == len(rest)
        e(f"s_branch {lload}") if p < 3 else None
    k.lab(lload)
    lepi = name + "_epi"
    k.lab(name + "_ldloop")
    e("s_add_u32 s25, s25, 1")
    e("s_cmp_ge_u32 s25, s24")
    e(f"s_cbranch_scc1 {lepi}")
    lq = LdsQ()
    barrier_block(lq, L, None)
    e("s_and_b32 s47, s25, 3")
    e("s_lshl_b32 s47, s47, 14")
    e("s_add_u32 s47, s47, s21")
    e("s_add_u32 s46, s25, 4")
    e("s_cmp_lt_u32 s46, s24")
    e("s_cbranch_scc0 4f")
    for j in range(2):
        e(f"s_add_u32 m0, s47, {KBASE + 8192*j:#x}")
        e("s_nop 0")
        e(f"buffer_load_dwordx4 v{vDK[j]}, s[4:7], s26 offen lds")
    k.lab("4")
    e("s_add_u32 s46, s25, 3")
    e("s_and_b32 s47, s46, 3")
    e("s_lshl_b32 s47, s47, 14")
    e("s_add_u32 s47, s47, s21")
    e("s_cmp_lt_u32 s46, s24")
    e("s_cbranch_scc0 5f")
    for j in range(2):
        e(f"s_add_u32 m0, s47, {VBASE + 8192*j:#x}")
        e("s_nop 0")
        e(f"buffer_load_dwordx4 v{vDV[j]}, s[8:11], s27 offen lds")
    k.lab("5")
    e("s_add_u32 s26, s26, 0x80000")
    e("s_add_u32 s27, s27, 0x80000")
    e(f"s_branch {name}_ldloop")
    k.lab(lepi)
    e("s_lshl_b32 s46, s22, 13")
    e("s_add_u32 s46, s46, s44")
    e(f"s_sub_u32 s47, {SZ_KV}, s46")
    mk_srd(k, 16, 40, off_sgpr=46, off_imm=WS['ctx'], size_sgpr=47)
    e(f"v_and_b32 v{vout}, 31, v{vl}")
    e(f"v_lshlrev_b32 v{vout}, 13, v{vout}")
    e(f"v_lshrrev_b32 v{vt2}, 5, v{vl}")
    e(f"v_lshl_add_u32 v{vout}, v{vt2}, 5, v{vout}")
    e(f"v_mov_b32 v{vb_}, v{vsum}")
    e("s_nop 1")
    e(f"v_permlane32_swap_b32 v{vsum}, v{vb_}")
    e("s_nop 1")
    e(f"v_add_f32 v{vsum}, v{vsum}, v{vb_}")
    e(f"v_rcp_f32 v{vsum}, v{vsum}")
    e("s_nop 7")
    for T in range(4):
        for hf in range(2):
            a = O + 16 * T + 8 * hf
            for i in range(8):
                e(f"v_mul_f32 v{a+i}, v{a+i}, v{vsum}")
            for i in range(4):
                e(f"v_cvt_pk_bf16_f32 v{a+i}, v{a+2*i}, v{a+2*i+1}")
            e(f"buffer_store_dwordx4 {vr(a,4)}, v{vout}, s[16:19], 0 offen offset:{64*T+16*hf}")
    k.lab(lend)
    e("s_endpgm")
    return k, 131072
```

```python
NAME = "sequential_preLN__compressed_kv_cla__dense_activation_squared_relu__prompt"

KA = dict(x=0, ckv=8, wq=16, wuk=24, wuv=32, wo=40, bx=48, w1=56, b1=64, w2=72, b2=80, out=88, dbg=96, ws=104)

SZ_XN = 2048 * 576 * 2
SZ_KV = 2048 * 4096 * 2
SZ_PART = 2048 * 576 * 4
SZ_ACT = 2048 * 4608 * 2
WS = {}
_off = 0
def _alloc(name, size):
    global _off
    WS[name] = _off
    _off += (size + 4095) // 4096 * 4096
for n, s in [("xn", SZ_XN), ("k", SZ_KV), ("v", SZ_KV), ("ctx", SZ_KV), ("p1", 8 * SZ_PART), ("h", SZ_XN),
             ("hn", SZ_XN), ("act", SZ_ACT), ("p2", 8 * SZ_PART)]:
    _alloc(n, s)
WS_TOTAL = 268435456

class Kern:
    def __init__(self, name):
        self.name = name
        self.L = []
        self.nv = 0
        self.ns = 32
        self._lab = 0
    def e(self, s):
        self.L.append("  " + s)
    def c(self, s):
        self.L.append("  ; " + s)
    def lab(self, s):
        self.L.append(s + ":")
    def newlab(self, p="L"):
        self._lab += 1
        return f"{self.name}_{p}{self._lab}"
    def usev(self, n):
        self.nv = max(self.nv, n)
    def uses(self, n):
        self.ns = max(self.ns, n)
    def text(self):
        return (f".globl {self.name}\n.p2align 8\n.type {self.name},@function\n{self.name}:\n"
                + "\n".join(self.L) + "\n")
    def desc(self):
        nv = max(self.nv, 8)
        acc = (nv + 3) // 4 * 4
        return (f".p2align 6\n.amdhsa_kernel {self.name}\n"
                f"  .amdhsa_next_free_vgpr {nv}\n  .amdhsa_next_free_sgpr {self.ns}\n"
                f"  .amdhsa_accum_offset {acc}\n  .amdhsa_group_segment_fixed_size 0\n"
                f"  .amdhsa_kernarg_size 112\n  .amdhsa_user_sgpr_count 2\n"
                f"  .amdhsa_user_sgpr_kernarg_segment_ptr 1\n  .amdhsa_system_sgpr_workgroup_id_x 1\n"
                f".end_amdhsa_kernel\n")

class VAlloc:
    def __init__(self, k, start=1):
        self.k = k; self.n = start
    def get(self, cnt=1, align=1):
        self.n = (self.n + align - 1) // align * align
        r = self.n; self.n += cnt
        self.k.usev(self.n)
        assert self.n <= 256, f"out of vgprs in {self.k.name}"
        return r

def vr(b, n):
    return f"v[{b}:{b+n-1}]" if n > 1 else f"v{b}"
def sr(b, n):
    return f"s[{b}:{b+n-1}]" if n > 1 else f"s{b}"

def mk_srd(k, sd, sptr, off_sgpr=None, off_imm=0, size=None, size_sgpr=None):
    k.e(f"s_add_u32 s{sd}, s{sptr}, {off_imm:#x}" if off_imm else f"s_mov_b32 s{sd}, s{sptr}")
    k.e(f"s_addc_u32 s{sd+1}, s{sptr+1}, 0" if off_imm else f"s_mov_b32 s{sd+1}, s{sptr+1}")
    if off_sgpr is not None:
        k.e(f"s_add_u32 s{sd}, s{sd}, s{off_sgpr}")
        k.e(f"s_addc_u32 s{sd+1}, s{sd+1}, 0")
    if size_sgpr is not None:
        k.e(f"s_mov_b32 s{sd+2}, s{size_sgpr}")
    else:
        k.e(f"s_mov_b32 s{sd+2}, {size:#x}")
    k.e(f"s_mov_b32 s{sd+3}, 0x00020000")

def wave_reduce_add(k, v, t):
    for mod in ["quad_perm:[1,0,3,2]", "quad_perm:[2,3,0,1]", "row_half_mirror", "row_mirror"]:
        k.e("s_nop 1")
        k.e(f"v_add_f32_dpp v{v}, v{v}, v{v} {mod} row_mask:0xf bank_mask:0xf")
    for op in ["v_permlane16_swap_b32", "v_permlane32_swap_b32"]:
        k.e(f"v_mov_b32 v{t}, v{v}")
        k.e("s_nop 1")
        k.e(f"{op} v{v}, v{t}")
        k.e("s_nop 1")
        k.e(f"v_add_f32 v{v}, v{v}, v{t}")

def bf16_round(k, v, t=None):
    k.e(f"v_cvt_pk_bf16_f32 v{v}, v{v}, v{v}")
    k.e(f"v_and_b32 v{v}, 0xffff0000, v{v}")

def layernorm12(k, X, va, sex):
    s = va.get(); t = va.get(); m = va.get(); d = va.get()
    k.e("s_mov_b64 exec, -1")
    k.e(f"v_mov_b32 v{s}, 0")
    k.e(f"s_mov_b64 exec, s[{sex}:{sex+1}]")
    for r in X:
        k.e(f"v_add_f32 v{s}, v{s}, v{r}")
    k.e("s_mov_b64 exec, -1")
    wave_reduce_add(k, s, t)
    k.e(f"v_mul_f32 v{m}, 0x3ae38e39, v{s}")
    k.e(f"v_mov_b32 v{s}, 0")
    k.e(f"s_mov_b64 exec, s[{sex}:{sex+1}]")
    for r in X:
        k.e(f"v_sub_f32 v{d}, v{r}, v{m}")
        k.e(f"v_fmac_f32 v{s}, v{d}, v{d}")
    k.e("s_mov_b64 exec, -1")
    wave_reduce_add(k, s, t)
    k.e(f"v_mul_f32 v{s}, 0x3ae38e39, v{s}")
    bf16_round(k, s)
    bf16_round(k, m)
    k.e(f"v_add_f32 v{s}, 0x3727c5ac, v{s}")
    bf16_round(k, s)
    k.e(f"v_sqrt_f32 v{s}, v{s}")
    k.e("s_nop 0")
    bf16_round(k, s)
    k.e(f"v_rcp_f32 v{s}, v{s}")
    k.e(f"s_mov_b64 exec, s[{sex}:{sex+1}]")
    for r in X:
        k.e(f"v_sub_f32 v{r}, v{r}, v{m}")
        bf16_round(k, r)
        k.e(f"v_mul_f32 v{r}, v{r}, v{s}")
```

```python
from gen_common import *

def compress_loop(k, epochs, period, scount):
    n = len(epochs)
    best = (0, 0)
    for st in range(n):
        reps = 1
        while st + (reps + 1) * period <= n and \
                epochs[st + reps * period: st + (reps + 1) * period] == epochs[st: st + period]:
            reps += 1
        if reps > best[0]:
            best = (reps, st)
    reps, st = best
    if reps < 2:
        for ep in epochs:
            k.L.extend(ep)
        return
    for ep in epochs[:st]:
        k.L.extend(ep)
    lab = k.newlab("loop")
    k.e(f"s_mov_b32 s{scount}, {reps}")
    k.lab(lab)
    for ep in epochs[st: st + period]:
        k.L.extend(ep)
    k.e(f"s_sub_u32 s{scount}, s{scount}, 1")
    k.e(f"s_cmp_lg_u32 s{scount}, 0")
    k.e(f"s_cbranch_scc1 {lab}")
    for ep in epochs[st + reps * period:]:
        k.L.extend(ep)


def gen_gemm(name, BM, BN, WM, WN, WK, NS, nst, nwg, mapfn, xperm, epi, ldx, ldw, pre_hook=None, LA=8, loop=True):
    assert WM * WN * WK == 8
    k = Kern(name)
    k.uses(48)
    TM = BM // WM // 16
    TN = BN // WN // 16
    XB = BM * 128
    WB = 64 * BN * 2
    SB = XB + WB
    nA = BM // 8; nB = BN // 8
    T = nA + nB
    nmin = T // 8; nextra = T % 8
    lds = NS * SB
    k.e(f"s_cmp_ge_u32 s2, {nwg}")
    lend = name + "_end"
    k.e(f"s_cbranch_scc1 {lend}")
    va = VAlloc(k, 1)
    vl = va.get(); vt = va.get(); vt2 = va.get(); vt3 = va.get()
    k.e(f"v_and_b32 v{vl}, 63, v0")
    k.e(f"v_lshrrev_b32 v{vt}, 6, v0")
    k.e("s_nop 0")
    k.e(f"v_readfirstlane_b32 s20, v{vt}")
    mapfn(k)
    k.e("s_lshl_b32 s21, s20, 10")
    k.e(f"s_and_b32 s22, s20, {WN-1}")
    k.e(f"s_lshr_b32 s23, s20, {WN.bit_length()-1}")
    k.e(f"s_and_b32 s24, s23, {WM-1}")
    k.e(f"s_lshr_b32 s25, s23, {WM.bit_length()-1}")
    SWN, SWM, SKG = 22, 24, 25
    assert nA % 8 == 0
    jA = nA // 8
    pieces = []
    jB = (nB + 7) // 8
    for j in range(jA): pieces.append(("A", j))
    for j in range(jB): pieces.append(("B", j))
    extra = None
    if nextra:
        extra = pieces.pop()
    assert len(pieces) == nmin
    voff = {}
    k.e(f"s_and_b32 s28, s20, 1")
    k.e(f"s_lshl_b32 s28, s28, 2")
    k.e(f"v_lshrrev_b32 v{vt}, 4, v{vl}")
    k.e(f"v_add_u32 v{vt}, s28, v{vt}")
    k.e(f"v_xor_b32 v{vt}, v{vt}, v{vl}")
    k.e(f"v_and_b32 v{vt}, 7, v{vt}")
    k.e(f"v_lshlrev_b32 v{vt}, 4, v{vt}")
    k.e(f"v_lshrrev_b32 v{vt2}, 3, v{vl}")
    k.e(f"s_lshl_b32 s28, s20, 3")
    k.e(f"v_add_u32 v{vt2}, s28, v{vt2}")
    k.e(f"s_mov_b32 s28, {ldx}")
    k.e(f"v_mul_lo_u32 v{vt2}, v{vt2}, s28")
    for j in range(jA):
        r = va.get(); voff[("A", j)] = r
        if j == 0:
            k.e(f"v_add_u32 v{r}, v{vt2}, v{vt}")
        else:
            k.e(f"v_add_u32 v{r}, {64*j*ldx:#x}, v{voff[('A',0)]}")
    k.e(f"s_mov_b32 s29, {ldw}")
    if BN == 256:
        k.e(f"v_lshrrev_b32 v{vt2}, 5, v{vl}")
        k.e(f"s_lshl_b32 s28, s20, 1")
        k.e(f"v_add_u32 v{vt2}, s28, v{vt2}")
        k.e(f"v_and_b32 v{vt}, 3, v{vt2}")
        k.e(f"v_lshrrev_b32 v{vt3}, 3, v{vt2}")
        k.e(f"v_lshl_or_b32 v{vt}, v{vt3}, 2, v{vt}")
        k.e(f"v_lshlrev_b32 v{vt}, 1, v{vt}")
        k.e(f"v_xor_b32 v{vt}, v{vt}, v{vl}")
        k.e(f"v_and_b32 v{vt}, 31, v{vt}")
        k.e(f"v_lshlrev_b32 v{vt}, 4, v{vt}")
        k.e(f"v_mul_lo_u32 v{vt2}, v{vt2}, s29")
        for j in range(jB):
            r = va.get(); voff[("B", j)] = r
            if j == 0:
                k.e(f"v_add_u32 v{r}, v{vt2}, v{vt}")
            else:
                k.e(f"v_add_u32 v{r}, {16*j*ldw:#x}, v{voff[('B',0)]}")
    else:
        CPR = BN // 8
        assert BN == 144
        for j in range(jB):
            r = va.get(); voff[("B", j)] = r
            k.e(f"s_lshl_b32 s28, s20, 6")
            k.e(f"s_add_u32 s28, s28, {512*j}")
            k.e(f"v_add_u32 v{vt}, s28, v{vl}")
            k.e(f"v_mul_u32_u24 v{vt2}, 3641, v{vt}")
            k.e(f"v_lshrrev_b32 v{vt2}, 16, v{vt2}")
            k.e(f"v_mul_u32_u24 v{vt3}, 18, v{vt2}")
            k.e(f"v_sub_u32 v{vt}, v{vt}, v{vt3}")
            k.e(f"v_lshlrev_b32 v{vt}, 4, v{vt}")
            if xperm == "nat":
                k.e(f"v_lshrrev_b32 v{vt3}, 1, v{vt2}")
                k.e(f"v_and_b32 v{vt3}, 4, v{vt3}")
                k.e(f"v_xor_b32 v{vt2}, v{vt2}, v{vt3}")
            k.e(f"v_mul_lo_u32 v{vt2}, v{vt2}, s29")
            k.e(f"v_add_u32 v{r}, v{vt2}, v{vt}")
    SOA, SOB = 30, 31
    k.e(f"s_mov_b32 s{SOA}, 0")
    k.e(f"s_mov_b32 s{SOB}, 0")

    def dma_ops(slot):
        ops = []
        allp = ([extra] if extra else []) + pieces
        for (kind, j) in allp:
            base = slot * SB + (0 if kind == "A" else XB) + 8192 * j
            g = [f"  s_add_u32 m0, s21, {base:#x}"]
            srd = "s[4:7]" if kind == "A" else "s[8:11]"
            so = SOA if kind == "A" else SOB
            ld = f"  buffer_load_dwordx4 v{voff[(kind,j)]}, {srd}, s{so} offen lds"
            if (kind, j) == extra:
                g = [f"  s_cmp_lt_u32 s20, {nextra}", "  s_cbranch_scc0 1f", g[0], "  s_nop 0", ld, "1:"]
            else:
                g = [g[0], "  s_nop 0", ld]
            ops.append(g)
        ops.append([f"  s_add_u32 s{SOA}, s{SOA}, 128", f"  s_add_u32 s{SOB}, s{SOB}, {64*ldw:#x}"])
        return ops
    q = va.get()
    k.e(f"v_lshrrev_b32 v{q}, 4, v{vl}")
    nks = 2 // WK
    vX = [va.get() for _ in range(nks)]
    k.e(f"v_and_b32 v{vt}, 15, v{vl}")
    k.e(f"v_lshrrev_b32 v{vt2}, 1, v{vt}")
    k.e(f"v_xor_b32 v{vt2}, v{vt2}, v{q}")
    if WK == 2:
        k.e(f"s_lshl_b32 s28, s{SKG}, 2")
        k.e(f"v_xor_b32 v{vt2}, s28, v{vt2}")
    k.e(f"v_lshlrev_b32 v{vt2}, 4, v{vt2}")
    k.e(f"s_mul_i32 s28, s{SWM}, {TM*16*128}")
    k.e(f"v_lshl_add_u32 v{vt2}, v{vt}, 7, v{vt2}")
    k.e(f"v_add_u32 v{vX[0]}, s28, v{vt2}")
    if nks == 2:
        k.e(f"v_xor_b32 v{vX[1]}, 64, v{vX[0]}")
    k.e(f"v_bfe_u32 v{vt}, v{vl}, 2, 2")
    k.e(f"v_and_b32 v{vt2}, 3, v{vl}")
    k.e(f"v_lshlrev_b32 v{vt2}, 3, v{vt2}")
    Wrd = {}
    if BN == 256:
        assert WK == 1
        vW = [va.get() for _ in range(TN)]
        k.e(f"v_lshl_add_u32 v{vt3}, v{q}, 3, v{vt}")
        k.e(f"v_lshl_add_u32 v{vt2}, v{vt3}, 9, v{vt2}")
        k.e(f"v_and_b32 v{vt3}, 1, v{q}")
        k.e(f"v_lshl_or_b32 v{vt3}, v{vt3}, 2, v{vt}")
        k.e(f"s_lshl_b32 s28, s{SWN}, 2")
        k.e(f"v_xor_b32 v{vt3}, s28, v{vt3}")
        for ti in range(TN):
            k.e(f"v_xor_b32 v{vt}, {ti}, v{vt3}")
            k.e(f"v_lshl_add_u32 v{vt}, v{vt}, 5, v{vt2}")
            k.e(f"v_add_u32 v{vW[ti]}, {XB:#x}, v{vt}")
        for ks in range(2):
            for ti in range(TN):
                for s in range(2):
                    Wrd[(ks, ti, s)] = (vW[ti], ks * 32 * 512 + s * 4 * 512)
    else:
        assert WN == 1
        RS = BN * 2
        if xperm == "nat":
            vW = [va.get() for _ in range(2)]
            k.e(f"v_and_b32 v{vt3}, 1, v{q}")
            k.e(f"v_lshl_add_u32 v{vt3}, v{vt3}, 2, v{vt}")
            k.e(f"v_lshl_add_u32 v{vt3}, v{q}, 3, v{vt3}")
            k.e(f"v_mul_u32_u24 v{vt}, {RS}, v{vt3}")
            k.e(f"v_add_u32 v{vW[0]}, v{vt}, v{vt2}")
            k.e(f"v_xor_b32 v{vt3}, 4, v{vt3}")
            k.e(f"v_mul_u32_u24 v{vt}, {RS}, v{vt3}")
            k.e(f"v_add_u32 v{vW[1]}, v{vt}, v{vt2}")
            sel = lambda s: (s, 0)
        else:
            vW = [va.get()]
            k.e(f"v_lshl_add_u32 v{vt3}, v{q}, 2, v{vt}")
            k.e(f"v_mul_u32_u24 v{vt}, {RS}, v{vt3}")
            k.e(f"v_add_u32 v{vW[0]}, v{vt}, v{vt2}")
            sel = lambda s: (0, s * 16 * RS)
        if WK == 2:
            k.e(f"s_mul_i32 s28, s{SKG}, {32*RS}")
            k.e(f"s_add_u32 s28, s28, {XB:#x}")
        else:
            k.e(f"s_mov_b32 s28, {XB:#x}")
        for r in vW:
            k.e(f"v_add_u32 v{r}, s28, v{r}")
        for ks in range(nks):
            for t in range(TN):
                for s in range(2):
                    i, imm = sel(s)
                    Wrd[(ks, t, s)] = (vW[i], imm + ks * 32 * RS + 32 * t)
    addr_regs = vX + vW
    hook_stores = 0
    if pre_hook:
        pre_hook(k, va, "load")
    for st in range(min(NS, nst)):
        for g in dma_ops(st):
            k.L.extend(g)
    if pre_hook:
        hook_stores = pre_hook(k, va, "compute", nmin * min(NS, nst) + (1 if False else 0))
    acc = va.get(TM * TN * 4, 4)
    def accr(mi, ti): return acc + (mi * TN + ti) * 4
    outerW = TN > TM
    NO, NI = (TN, TM) if outerW else (TM, TN)
    RO = (LA + NI - 1) // NI + 1
    while (NO * nks * NS) % RO: RO += 1
    oring = va.get(RO * 4, 4)
    NIS = 2 if (nks * NS) % 2 == 0 else 3
    iring = va.get(NIS * NI * 4, 4)
    LB = max(NI + LA - 4, 2)
    slots = []
    for st in range(nst):
        for ks in range(nks):
            for o in range(NO):
                for i in range(NI):
                    slots.append((st, ks, o, i))
    per_stage = nks * NO * NI
    def reads_for(kind, ks, idx, reg):
        isW = (kind == "o") == outerW
        if isW:
            out = []
            for s in range(2):
                v, imm = Wrd[(ks, idx, s)]
                out.append(f"  ds_read_b64_tr_b16 {vr(reg+2*s,2)}, v{v} offset:{imm}")
            return out
        return [f"  ds_read_b128 {vr(reg,4)}, v{vX[ks]} offset:{idx*2048}"]
    frags = []
    ocnt = 0; icnt = 0
    fmap = {}
    for st in range(nst):
        for ks in range(nks):
            base = (st * nks + ks) * NO * NI
            for i in range(NI):
                f = dict(kind="i", st=st, ks=ks, idx=i, first=base + i, last=base + (NO - 1) * NI + i,
                         reg=iring + ((icnt % NIS) * NI + i) * 4)
                frags.append(f); fmap[("i", st, ks, i)] = f
            icnt += 1
            for o in range(NO):
                f = dict(kind="o", st=st, ks=ks, idx=o, first=base + o * NI, last=base + o * NI + NI - 1,
                         reg=oring + (ocnt % RO) * 4)
                ocnt += 1
                frags.append(f); fmap[("o", st, ks, o)] = f
    lastuse = {}
    for f in sorted(frags, key=lambda f: f["first"]):
        p = f["first"] - LA
        if f["kind"] == "i":
            p = f["first"] - NO * NI + 1 + f["idx"] * max(1, (NO * NI - LA) // NI)
            p = min(p, f["first"] - LA)
        p = max(p, lastuse.get(f["reg"], -1) + 1)
        bar = f["st"] * per_stage - LB if f["st"] > 0 else 0
        p = max(p, bar, 0)
        f["pos"] = p
        lastuse[f["reg"]] = f["last"]
    bypos = {}
    for f in frags:
        bypos.setdefault(f["pos"], []).append(f)
    for p in bypos:
        bypos[p].sort(key=lambda f: f["first"])
    epochs = []
    cur = []
    inflight = min(NS, nst) - 1
    cur.append(f"  s_waitcnt vmcnt({nmin*inflight + hook_stores})")
    cur.append("  s_barrier")
    issued = 0; done = 0
    pend_dma = []
    started = set()
    for u, (st, ks, o, i) in enumerate(slots):
        nxt = st + 1
        if nxt < nst and u == nxt * per_stage - LB:
            epochs.append(cur); cur = []
            infl = max(0, min(NS - 2, nst - 1 - nxt))
            cur.append(f"  s_waitcnt vmcnt({nmin*infl}) lgkmcnt(0)")
            done = issued
            cur.append("  s_barrier")
            sl = nxt % NS
            delta = SB if sl != 0 else -(NS - 1) * SB
            for r in addr_regs:
                if delta > 0:
                    cur.append(f"  v_add_u32 v{r}, {delta:#x}, v{r}")
                else:
                    cur.append(f"  v_subrev_u32 v{r}, {-delta:#x}, v{r}")
            if st + NS < nst:
                pend_dma = dma_ops(st % NS)
        for f in bypos.get(u, []):
            for ins in reads_for(f["kind"], f["ks"], f["idx"], f["reg"]):
                cur.append(ins); issued += 1
            f["seq"] = issued
        fo = fmap[("o", st, ks, o)]; fi = fmap[("i", st, ks, i)]
        need = max(fo["seq"], fi["seq"])
        if need > done:
            n = min(issued - need, 15)
            cur.append(f"  s_waitcnt lgkmcnt({n})")
            done = issued - n
        fw, fx = (fo, fi) if outerW else (fi, fo)
        mi, ti = (i, o) if outerW else (o, i)
        a = accr(mi, ti)
        c = vr(a, 4) if (mi, ti) in started else "0"
        started.add((mi, ti))
        cur.append(f"  v_mfma_f32_16x16x32_bf16 {vr(a,4)}, {vr(fw['reg'],4)}, {vr(fx['reg'],4)}, {c}")
        if pend_dma:
            cur.extend(pend_dma.pop(0))
    assert not pend_dma
    epochs.append(cur)
    if loop:
        compress_loop(k, epochs, NS, 33)
    else:
        for ep in epochs: k.L.extend(ep)
    k.e("s_nop 15")
    keep = list(range(TM))
    env = dict(k=k, va=va, vl=vl, q=q, vt=vt, vt2=vt2, vt3=vt3, accr=accr, TM=TM, TN=TN, SWM=SWM, SWN=SWN, SKG=SKG)
    if WK == 2:
        H = TM // 2
        k.e("s_barrier")
        RB = H * TN * 1024
        assert 8 * RB <= lds, (8 * RB, lds)
        k.e(f"s_mul_i32 s28, s20, {RB}")
        k.e(f"v_lshlrev_b32 v{vt}, 4, v{vl}")
        k.e(f"v_add_u32 v{vt2}, s28, v{vt}")
        k.e(f"s_xor_b32 s28, s20, 4")
        k.e(f"s_mul_i32 s28, s28, {RB}")
        k.e(f"v_add_u32 v{vt3}, s28, v{vt}")
        l1 = k.newlab("kg1"); l2 = k.newlab("kgj")
        tmp = oring
        ntmp = (RO * 4 + NIS * NI * 4) // 4
        assert iring == oring + RO * 4
        for kg in range(2):
            if kg == 0:
                k.e(f"s_cmp_eq_u32 s{SKG}, 0")
                k.e(f"s_cbranch_scc0 {l1}")
            else:
                k.lab(l1)
            send = range(H, TM) if kg == 0 else range(0, H)
            kp = range(0, H) if kg == 0 else range(H, TM)
            n = 0
            for mi in send:
                for ti in range(TN):
                    k.e(f"ds_write_b128 v{vt2}, {vr(accr(mi,ti),4)} offset:{n*1024}")
                    n += 1
            k.e("s_waitcnt lgkmcnt(0)")
            k.e("s_barrier")
            lst = [(mi, ti) for mi in kp for ti in range(TN)]
            for b in range(0, len(lst), ntmp):
                blk = lst[b: b + ntmp]
                for j, (mi, ti) in enumerate(blk):
                    k.e(f"ds_read_b128 {vr(tmp+4*j,4)}, v{vt3} offset:{(b+j)*1024}")
                for j, (mi, ti) in enumerate(blk):
                    k.e(f"s_waitcnt lgkmcnt({min(len(blk)-1-j,15)})")
                    for r in range(4):
                        k.e(f"v_add_f32 v{accr(mi,ti)+r}, v{accr(mi,ti)+r}, v{tmp+4*j+r}")
            epi(env, list(kp))
            if kg == 0:
                k.e(f"s_branch {lend}")
    else:
        epi(env, keep)
    k.lab(lend)
    k.e("s_endpgm")
    return k, lds
```

```python
from gen_common import *
from gen_gemm import gen_gemm

def k1_map(k):
    k.e(f"s_load_dwordx2 s[34:35], s[0:1], {KA['ckv']}")
    k.e(f"s_load_dwordx4 s[36:39], s[0:1], {KA['wuk']}")
    k.e(f"s_load_dwordx2 s[40:41], s[0:1], {KA['ws']}")
    k.e(f"s_load_dwordx2 s[42:43], s[0:1], {KA['x']}")
    k.e("s_and_b32 s44, s2, 7")
    k.e("s_lshr_b32 s45, s2, 3")
    k.e("s_and_b32 s46, s45, 3")
    k.e("s_lshl_b32 s44, s44, 2")
    k.e("s_add_u32 s44, s44, s46")
    k.e("s_lshr_b32 s45, s45, 2")
    k.e("s_waitcnt lgkmcnt(0)")
    k.e(f"s_mul_i32 s46, s45, {256*1024}")
    k.e(f"s_sub_u32 s47, {2048*1024}, s46")
    mk_srd(k, 4, 34, off_sgpr=46, size_sgpr=47)
    k.e("s_cmp_lt_u32 s44, 16")
    k.e("s_cselect_b32 s36, s36, s38")
    k.e("s_cselect_b32 s37, s37, s39")
    k.e(f"s_cselect_b32 s26, 0, {WS['v']-WS['k']:#x}")
    k.e(f"s_add_u32 s26, s26, {WS['k']:#x}")
    k.e("s_and_b32 s44, s44, 15")
    k.e("s_lshl_b32 s46, s44, 9")
    k.e(f"s_sub_u32 s47, {512*8192}, s46")
    mk_srd(k, 8, 36, off_sgpr=46, size_sgpr=47)
    k.e(f"s_mul_i32 s47, s45, {256*8192}")
    k.e("s_add_u32 s46, s46, s47")
    k.e(f"s_sub_u32 s47, {SZ_KV}, s46")
    k.e("s_add_u32 s46, s46, s26")
    mk_srd(k, 12, 40, off_sgpr=46, size_sgpr=47)

def k1_hook(k, va, phase, ndma=0):
    if phase == "load":
        st = {}
        k1_hook.st = st
        k.e("s_lshl_b32 s44, s2, 3")
        k.e("s_add_u32 s44, s44, s20")
        k.e("s_mul_i32 s44, s44, 1152")
        mk_srd(k, 16, 42, off_sgpr=44, size=1152)
        st["vo"] = va.get(); st["raw"] = va.get(6, 2)
        k.e(f"v_and_b32 v{st['vo']}, 63, v0")
        k.e(f"v_lshlrev_b32 v{st['vo']}, 3, v{st['vo']}")
        k.e(f"v_cmp_gt_u32 vcc, 384, v{st['vo']}")
        k.e("s_mov_b64 s[46:47], vcc")
        k.e("s_mov_b64 exec, vcc")
        for i in range(3):
            k.e(f"buffer_load_dwordx2 {vr(st['raw']+2*i,2)}, v{st['vo']}, s[16:19], 0 offen offset:{384*i}")
        k.e("s_mov_b64 exec, -1")
        return 0
    st = k1_hook.st
    save = va.n
    X = [va.get() for _ in range(12)]
    k.e(f"s_waitcnt vmcnt({ndma})")
    k.e("s_mov_b64 exec, s[46:47]")
    for i in range(6):
        k.e(f"v_lshlrev_b32 v{X[2*i]}, 16, v{st['raw']+i}")
        k.e(f"v_and_b32 v{X[2*i+1]}, 0xffff0000, v{st['raw']+i}")
    layernorm12(k, X, va, 46)
    for i in range(6):
        k.e(f"v_cvt_pk_bf16_f32 v{st['raw']+i}, v{X[2*i]}, v{X[2*i+1]}")
    mk_srd(k, 16, 40, off_sgpr=44, off_imm=WS['xn'], size=1152) if WS['xn'] else mk_srd(k, 16, 40, off_sgpr=44, size=1152)
    for i in range(3):
        k.e(f"buffer_store_dwordx2 {vr(st['raw']+2*i,2)}, v{st['vo']}, s[16:19], 0 offen offset:{384*i}")
    k.e("s_mov_b64 exec, -1")
    va.n = save
    return 3

def epi_kv(env, keep):
    k = env["k"]; vl = env["vl"]; q = env["q"]; vt = env["vt"]; vt2 = env["vt2"]; accr = env["accr"]
    TM, TN = env["TM"], env["TN"]
    k.e(f"v_and_b32 v{vt}, 15, v{vl}")
    k.e(f"v_lshlrev_b32 v{vt}, 13, v{vt}")
    k.e(f"v_lshl_add_u32 v{vt}, v{q}, 4, v{vt}")
    k.e(f"s_mul_i32 s28, s{env['SWM']}, {TM*16*8192}")
    k.e(f"s_mul_i32 s29, s{env['SWN']}, {TN*32}")
    k.e("s_add_u32 s28, s28, s29")
    k.e(f"v_add_u32 v{vt}, s28, v{vt}")
    for mi in keep:
        k.e(f"s_mov_b32 s28, {mi*16*8192:#x}")
        for pt in range(TN // 2):
            a = accr(mi, 2 * pt); b = accr(mi, 2 * pt + 1)
            k.e(f"v_cvt_pk_bf16_f32 v{a}, v{a}, v{a+1}")
            k.e(f"v_cvt_pk_bf16_f32 v{a+1}, v{a+2}, v{a+3}")
            k.e(f"v_cvt_pk_bf16_f32 v{a+2}, v{b}, v{b+1}")
            k.e(f"v_cvt_pk_bf16_f32 v{a+3}, v{b+2}, v{b+3}")
            k.e(f"buffer_store_dwordx4 {vr(a,4)}, v{vt}, s[12:15], s28 offen offset:{64*pt}")

def mk_splitk_map(xname, ldx, wname, ksl, pname):
    def f(k):
        k.e(f"s_load_dwordx2 s[36:37], s[0:1], {KA[wname]}")
        k.e(f"s_load_dwordx2 s[40:41], s[0:1], {KA['ws']}")
        k.e("s_and_b32 s44, s2, 7")
        k.e("s_lshr_b32 s45, s2, 3")
        k.e("s_and_b32 s42, s45, 3")
        k.e("s_lshr_b32 s45, s45, 2")
        k.e("s_and_b32 s46, s44, 1")
        k.e("s_lshl_b32 s46, s46, 3")
        k.e("s_add_u32 s45, s45, s46")
        k.e("s_lshr_b32 s43, s44, 1")
        k.e("s_waitcnt lgkmcnt(0)")
        k.e(f"s_mul_i32 s46, s45, {128*ldx}")
        k.e(f"s_mul_i32 s47, s43, {ksl*2}")
        k.e("s_add_u32 s46, s46, s47")
        k.e(f"s_sub_u32 s47, {2048*ldx}, s46")
        mk_srd(k, 4, 40, off_sgpr=46, off_imm=WS[xname], size_sgpr=47)
        k.e(f"s_mul_i32 s46, s43, {ksl*1152}")
        k.e("s_mul_i32 s47, s42, 288")
        k.e("s_add_u32 s46, s46, s47")
        k.e(f"s_sub_u32 s47, {ksl*4*1152}, s46")
        mk_srd(k, 8, 36, off_sgpr=46, size_sgpr=47)
        k.e(f"s_mul_i32 s46, s43, {SZ_PART}")
        k.e(f"s_mul_i32 s47, s45, {128*2304}")
        k.e("s_add_u32 s46, s46, s47")
        k.e("s_mul_i32 s47, s42, 576")
        k.e("s_add_u32 s46, s46, s47")
        k.e(f"s_sub_u32 s47, {4*SZ_PART}, s46")
        mk_srd(k, 12, 40, off_sgpr=46, off_imm=WS[pname], size_sgpr=47)
    return f

def epi_part(env, keep):
    k = env["k"]; vl = env["vl"]; q = env["q"]; vt = env["vt"]; accr = env["accr"]
    TM, TN = env["TM"], env["TN"]
    k.e(f"v_and_b32 v{vt}, 15, v{vl}")
    k.e(f"v_mul_u32_u24 v{vt}, 2304, v{vt}")
    k.e(f"v_lshl_add_u32 v{vt}, v{q}, 4, v{vt}")
    k.e(f"s_mul_i32 s28, s{env['SWM']}, {TM*16*2304}")
    k.e(f"v_add_u32 v{vt}, s28, v{vt}")
    for mi in keep:
        k.e(f"s_mov_b32 s28, {mi*16*2304:#x}")
        for t in range(TN):
            k.e(f"buffer_store_dwordx4 {vr(accr(mi,t),4)}, v{vt}, s[12:15], s28 offen offset:{64*t}")

def k5_map(k):
    k.e(f"s_load_dwordx4 s[36:39], s[0:1], {KA['w1']}")
    k.e(f"s_load_dwordx2 s[40:41], s[0:1], {KA['ws']}")
    k.e("s_and_b32 s44, s2, 7")
    k.e("s_lshr_b32 s45, s2, 3")
    k.e("s_and_b32 s46, s45, 3")
    k.e("s_lshl_b32 s44, s44, 2")
    k.e("s_add_u32 s44, s44, s46")
    k.e("s_lshr_b32 s45, s45, 2")
    k.e("s_and_b32 s26, s44, 1")
    k.e("s_waitcnt lgkmcnt(0)")
    k.e(f"s_mul_i32 s46, s45, {256*1152}")
    k.e(f"s_sub_u32 s47, {2048*1152}, s46")
    mk_srd(k, 4, 40, off_sgpr=46, off_imm=WS['hn'], size_sgpr=47)
    k.e("s_mul_i32 s46, s44, 288")
    k.e(f"s_sub_u32 s47, {576*9216}, s46")
    mk_srd(k, 8, 36, off_sgpr=46, size_sgpr=47)
    k.e(f"s_sub_u32 s47, {4608*2}, s46")
    mk_srd(k, 16, 38, off_sgpr=46, size_sgpr=47)
    k.e("s_and_b32 s46, s46, 0xffffffc0")
    k.e(f"s_mul_i32 s47, s45, {256*9216}")
    k.e("s_add_u32 s46, s46, s47")
    k.e(f"s_sub_u32 s47, {SZ_ACT}, s46")
    mk_srd(k, 12, 40, off_sgpr=46, off_imm=WS['act'], size_sgpr=47)

def k5_hook(k, va, phase, ndma=0):
    if phase == "load":
        b = va.get(18, 2); t = va.get()
        k5_hook.b = b
        k.e(f"v_bfe_u32 v{t}, v0, 4, 2")
        k.e(f"v_lshlrev_b32 v{t}, 3, v{t}")
        for i in range(9):
            k.e(f"buffer_load_dwordx2 {vr(b+2*i,2)}, v{t}, s[16:19], 0 offen offset:{32*i}")
        return 0
    return 0

def epi_act(env, keep):
    k = env["k"]; vl = env["vl"]; q = env["q"]; vt = env["vt"]; vt2 = env["vt2"]; vt3 = env["vt3"]; accr = env["accr"]
    TM, TN = env["TM"], env["TN"]
    b = k5_hook.b
    k.e(f"v_and_b32 v{vt}, 15, v{vl}")
    k.e(f"v_mul_u32_u24 v{vt}, 9216, v{vt}")
    k.e(f"v_lshl_add_u32 v{vt}, v{q}, 4, v{vt}")
    k.e(f"s_mul_i32 s28, s{env['SWM']}, {TM*16*9216}")
    k.e(f"v_add_u32 v{vt}, s28, v{vt}")
    for t in range(TN):
        for h in range(2):
            k.e(f"v_lshlrev_b32 v{vt2}, 16, v{b+2*t+h}")
            k.e(f"v_and_b32 v{vt3}, 0xffff0000, v{b+2*t+h}")
            for mi in keep:
                a = accr(mi, t) + 2 * h
                k.e(f"v_add_f32 v{a}, v{a}, v{vt2}")
                k.e(f"v_add_f32 v{a+1}, v{a+1}, v{vt3}")
                k.e(f"v_max_f32 v{a}, 0, v{a}")
                k.e(f"v_max_f32 v{a+1}, 0, v{a+1}")
                k.e(f"v_mul_f32 v{a}, v{a}, v{a}")
                k.e(f"v_mul_f32 v{a+1}, v{a+1}, v{a+1}")
    lo = k.newlab("odd"); lj = k.newlab("join")
    k.e("s_cmp_eq_u32 s26, 0")
    k.e(f"s_cbranch_scc0 {lo}")
    for par in range(2):
        if par: k.lab(lo)
        for mi in keep:
            k.e(f"s_mov_b32 s28, {mi*16*9216:#x}")
            t = 0
            while t < TN:
                g = (t + par) >> 1; e = (t + par) & 1
                a = accr(mi, t)
                if e == 0 and t + 1 < TN:
                    bb = accr(mi, t + 1)
                    k.e(f"v_cvt_pk_bf16_f32 v{a}, v{a}, v{a+1}")
                    k.e(f"v_cvt_pk_bf16_f32 v{a+1}, v{a+2}, v{a+3}")
                    k.e(f"v_cvt_pk_bf16_f32 v{a+2}, v{bb}, v{bb+1}")
                    k.e(f"v_cvt_pk_bf16_f32 v{a+3}, v{bb+2}, v{bb+3}")
                    k.e(f"buffer_store_dwordx4 {vr(a,4)}, v{vt}, s[12:15], s28 offen offset:{64*g}")
                    t += 2
                else:
                    k.e(f"v_cvt_pk_bf16_f32 v{a}, v{a}, v{a+1}")
                    k.e(f"v_cvt_pk_bf16_f32 v{a+1}, v{a+2}, v{a+3}")
                    k.e(f"buffer_store_dwordx2 {vr(a,2)}, v{vt}, s[12:15], s28 offen offset:{64*g+8*e}")
                    t += 1
        if par == 0:
            k.e(f"s_branch {lj}")
    k.lab(lj)

def gen_reduce(name, S, pname, final):
    k = Kern(name); k.uses(48)
    lend = name + "_end"
    k.e("s_cmp_ge_u32 s2, 256")
    k.e(f"s_cbranch_scc1 {lend}")
    va = VAlloc(k, 1)
    vo = va.get(); vo2 = va.get(); vt = va.get()
    k.e(f"v_lshrrev_b32 v{vt}, 6, v0")
    k.e(f"s_load_dwordx2 s[40:41], s[0:1], {KA['ws']}")
    k.e(f"s_load_dwordx2 s[42:43], s[0:1], {KA['x']}")
    k.e(f"s_load_dwordx2 s[44:45], s[0:1], {KA['b2']}")
    k.e(f"s_load_dwordx2 s[36:37], s[0:1], {KA['out']}")
    k.e(f"v_readfirstlane_b32 s20, v{vt}")
    k.e("s_lshl_b32 s21, s2, 3")
    k.e("s_add_u32 s21, s21, s20")
    k.e("s_mul_i32 s22, s21, 1152")
    k.e("s_mul_i32 s23, s21, 2304")
    k.e(f"v_and_b32 v{vo}, 63, v0")
    k.e(f"v_lshlrev_b32 v{vo2}, 3, v{vo}")
    k.e(f"v_lshlrev_b32 v{vo}, 4, v{vo}")
    k.e(f"v_cmp_gt_u32 vcc, 384, v{vo2}")
    k.e("s_mov_b64 s[46:47], vcc")
    k.e("s_waitcnt lgkmcnt(0)")
    k.e(f"s_sub_u32 s24, {S*SZ_PART}, s23")
    mk_srd(k, 4, 40, off_sgpr=23, off_imm=WS[pname], size_sgpr=24)
    if final:
        mk_srd(k, 8, 40, off_sgpr=22, off_imm=WS['h'], size=1152)
        mk_srd(k, 12, 36, off_sgpr=22, size=1152)
        mk_srd(k, 16, 44, size=1152)
    else:
        mk_srd(k, 8, 42, off_sgpr=22, size=1152)
        mk_srd(k, 12, 40, off_sgpr=22, off_imm=WS['h'], size=1152)
        mk_srd(k, 16, 40, off_sgpr=22, off_imm=WS['hn'], size=1152)
    k.e("s_mov_b64 exec, s[46:47]")
    P = va.get(12 * S, 4)
    R = va.get(6, 2)
    B = va.get(6, 2)
    for s in range(S):
        k.e(f"s_mov_b32 s25, {s*SZ_PART:#x}")
        for i in range(3):
            k.e(f"buffer_load_dwordx4 {vr(P+12*s+4*i,4)}, v{vo}, s[4:7], s25 offen offset:{768*i}")
    for i in range(3):
        k.e(f"buffer_load_dwordx2 {vr(R+2*i,2)}, v{vo2}, s[8:11], 0 offen offset:{384*i}")
    if final:
        for i in range(3):
            k.e(f"buffer_load_dwordx2 {vr(B+2*i,2)}, v{vo2}, s[16:19], 0 offen offset:{384*i}")
    nrest = 3 + (3 if final else 0)
    for s in range(1, S):
        k.e(f"s_waitcnt vmcnt({nrest + 3*(S-1-s)})")
        for j in range(12):
            k.e(f"v_add_f32 v{P+j}, v{P+j}, v{P+12*s+j}")
    k.e("s_waitcnt vmcnt(0)")
    X = [P + j for j in range(12)]
    t0 = va.get(); t1 = va.get()
    for i in range(6):
        a, b = X[2 * i], X[2 * i + 1]
        bf16_round(k, a); bf16_round(k, b)
        if final:
            k.e(f"v_lshlrev_b32 v{t0}, 16, v{B+i}")
            k.e(f"v_and_b32 v{t1}, 0xffff0000, v{B+i}")
            k.e(f"v_add_f32 v{a}, v{a}, v{t0}")
            k.e(f"v_add_f32 v{b}, v{b}, v{t1}")
            bf16_round(k, a); bf16_round(k, b)
        k.e(f"v_lshlrev_b32 v{t0}, 16, v{R+i}")
        k.e(f"v_and_b32 v{t1}, 0xffff0000, v{R+i}")
        k.e(f"v_add_f32 v{a}, v{a}, v{t0}")
        k.e(f"v_add_f32 v{b}, v{b}, v{t1}")
        k.e(f"v_cvt_pk_bf16_f32 v{R+i}, v{a}, v{b}")
    for i in range(3):
        k.e(f"buffer_store_dwordx2 {vr(R+2*i,2)}, v{vo2}, s[12:15], 0 offen offset:{384*i}")
    if not final:
        for i in range(6):
            k.e(f"v_lshlrev_b32 v{X[2*i]}, 16, v{R+i}")
            k.e(f"v_and_b32 v{X[2*i+1]}, 0xffff0000, v{R+i}")
        layernorm12(k, X, va, 46)
        for i in range(6):
            k.e(f"v_cvt_pk_bf16_f32 v{B+i}, v{X[2*i]}, v{X[2*i+1]}")
        for i in range(3):
            k.e(f"buffer_store_dwordx2 {vr(B+2*i,2)}, v{vo2}, s[16:19], 0 offen offset:{384*i}")
    k.lab(lend)
    k.e("s_endpgm")
    return k, 0
```

```python
import sys, json
from gen_common import *
from gen_gemm import gen_gemm
from gen_kernels import *
try:
    from gen_attn import gen_attn
except ImportError:
    gen_attn = None

def build(opts):
    ks = []
    k1, l1 = gen_gemm("kvproj_kernel", 256, 256, 2, 4, 1, 2, 8, 256, k1_map, "nat", epi_kv, 1024, 8192, pre_hook=k1_hook)
    ks.append((k1, l1, 256, 512))
    if gen_attn:
        k2, l2 = gen_attn("attn_kernel")
        ks.append((k2, l2, 256, 512))
    k3, l3 = gen_gemm("oproj_kernel", 128, 144, 4, 1, 2, 3, 16, 256, mk_splitk_map("ctx", 8192, "wo", 1024, "p1"), "nat", epi_part, 8192, 1152)
    ks.append((k3, l3, 256, 512))
    k4, l4 = gen_reduce("red1_kernel", 4, "p1", False)
    ks.append((k4, l4, 256, 512))
    k5, l5 = gen_gemm("ffn1_kernel", 256, 144, 4, 1, 2, 3, 9, 256, k5_map, "nat", epi_act, 1152, 9216, pre_hook=k5_hook)
    ks.append((k5, l5, 256, 512))
    k6, l6 = gen_gemm("ffn2_kernel", 128, 144, 4, 1, 2, 3, 18, 256, mk_splitk_map("act", 9216, "w2", 1152, "p2"), "s32", epi_part, 9216, 1152)
    ks.append((k6, l6, 256, 512))
    k7, l7 = gen_reduce("red2_kernel", 4, "p2", True)
    ks.append((k7, l7, 256, 512))
    return ks

def main():
    out = sys.argv[1] if len(sys.argv) > 1 else f"cdna_kernels/{NAME}.s"
    ks = build({})
    hdr = open(f"cdna_kernels/{NAME}.s.ref").read().split("\n")
    lines = [l for l in hdr if l.startswith(";") and "@launch" not in l and "Override launch" not in l and "grid=ceil" not in l]
    txt = "\n".join(lines[:16]) + "\n"
    for k, lds, g, b in ks:
        txt += f"; @launch kernel={k.name} grid=({g},1,1) block=({b},1,1) lds={lds}\n"
    txt += '.amdgcn_target "amdgcn-amd-amdhsa--gfx950"\n.text\n'
    for k, *_ in ks:
        txt += k.text()
    txt += '.section .rodata,"a"\n'
    for k, *_ in ks:
        txt += k.desc()
    open(out, "w").write(txt)
    lay = {"xn": (WS["xn"], 2048, 576, "nat"), "k": (WS["k"], 2048, 4096, "s32"), "v": (WS["v"], 2048, 4096, "s32"),
           "ctx": (WS["ctx"], 2048, 4096, "nat"), "h": (WS["h"], 2048, 576, "nat"), "hn": (WS["hn"], 2048, 576, "nat"),
           "act": (WS["act"], 2048, 4608, "s32")}
    json.dump(lay, open("layout.json", "w"))
    for k, lds, g, b in ks:
        print(k.name, "vgpr", k.nv, "lds", lds, "instrs", len(k.L))
main()
```

```python
from gen_common import *
import struct, os
DBG = bool(os.environ.get("ATTN_DBG"))
DBG_OFF = 200 * 1024 * 1024

def f2u(x):
    return struct.unpack("<I", struct.pack("<f", x))[0]

KBASE = 0
VBASE = 65536
XTRA = 131072
SLOT = 16384
LDS_TOTAL = 163840

class LdsQ:
    def __init__(self): self.issued = 0; self.done = 0
    def issue(self, n=1):
        self.issued += n; return self.issued
    def need(self, out, seq):
        if seq > self.done:
            n = min(self.issued - seq, 15)
            out.append(f"  s_waitcnt lgkmcnt({n})")
            self.done = self.issued - n
    def drain(self): self.done = self.issued

def gen_attn(name, RATE=4.4, GBAR=26, DGAPS=(1, 5, 9, 13)):
    k = Kern(name); k.uses(56); k.usev(256)
    lend = name + "_end"
    e = k.e
    L = k.L
    vl = 1; vt = 2; vt2 = 3; vt3 = 4
    vKA = list(range(5, 13)); vVA = list(range(13, 17)); vDK = [17, 18]; vDV = [19, 20]
    vsum = 22; vmk = 23; vneg = 24; va_ = 25; vb_ = 26; vd = 28; vout = 29
    O = 32; S = [96, 128]; Q = 160; FR = 192; NM = 232
    R = 8
    pWA = list(range(96, 104)); pXA = list(range(104, 112)); pDX = [112, 113]; pDW = [114, 115]
    AR = 128; BR = 144
    STH = 31
    e("s_cmp_ge_u32 s2, 256")
    e(f"s_cbranch_scc1 {lend}")
    e(f"s_load_dwordx2 s[40:41], s[0:1], {KA['ws']}")
    e(f"s_load_dwordx2 s[42:43], s[0:1], {KA['wq']}")
    e(f"v_lshrrev_b32 v{vt}, 6, v0")
    e(f"v_and_b32 v{vl}, 63, v0")
    if DBG:
        e("s_memtime s[50:51]")
        e("v_mov_b32 v30, 0")
        e("v_mov_b32 v31, 0")
        e("s_waitcnt lgkmcnt(0)")
        e("v_writelane_b32 v30, s50, 0")
    e(f"v_readfirstlane_b32 s20, v{vt}")
    e("s_and_b32 s44, s2, 7")
    e("s_lshr_b32 s45, s2, 3")
    e("s_and_b32 s46, s45, 3")
    e("s_lshl_b32 s44, s44, 2")
    e("s_add_u32 s44, s44, s46")
    e("s_lshr_b32 s45, s45, 2")
    e("s_lshl_b32 s21, s20, 10")
    e("s_sub_u32 s46, 15, s45")
    e("s_lshl_b32 s46, s46, 7")
    e("s_lshl_b32 s47, s20, 5")
    e("s_add_u32 s46, s46, s47")
    e("s_lshl_b32 s47, s45, 7")
    e("s_sub_u32 s48, 7, s20")
    e("s_lshl_b32 s48, s48, 5")
    e("s_add_u32 s47, s47, s48")
    e("s_cmp_lt_u32 s20, 4")
    e("s_cselect_b32 s22, s46, s47")
    e("s_lshr_b32 s23, s22, 6")
    e("s_lshl_b32 s24, s45, 1")
    e("s_sub_u32 s24, 32, s24")
    e("s_sub_u32 s28, s24, 3")
    e("s_sub_u32 s29, s24, 4")
    e("s_lshl_b32 s49, s44, 19")
    e("s_lshl_b32 s44, s44, 8")
    e(f"s_mov_b32 s{STH}, {f2u(30.0):#x}")
    e(f"v_lshrrev_b32 v{vt}, 4, v{vl}")
    e("s_lshl_b32 s46, s20, 2")
    e(f"v_add_u32 v{vt2}, s46, v{vt}")
    e(f"v_xor_b32 v{vt3}, v{vt2}, v{vl}")
    e(f"v_and_b32 v{vt3}, 15, v{vt3}")
    e(f"v_lshlrev_b32 v{vt3}, 4, v{vt3}")
    e(f"v_lshl_add_u32 v{vDK[0]}, v{vt2}, 13, v{vt3}")
    e(f"v_add_u32 v{vDK[1]}, 0x40000, v{vDK[0]}")
    e(f"v_lshlrev_b32 v{vt3}, 2, v{vt}")
    e(f"v_xor_b32 v{vt3}, v{vt3}, v{vl}")
    e(f"v_and_b32 v{vt3}, 15, v{vt3}")
    e(f"v_lshlrev_b32 v{vt3}, 4, v{vt3}")
    e(f"v_lshl_add_u32 v{pDW[0]}, v{vt2}, 13, v{vt3}")
    e(f"v_add_u32 v{pDW[1]}, 0x40000, v{pDW[0]}")
    e(f"v_xor_b32 v{vt3}, v{vt}, v{vl}")
    e(f"v_and_b32 v{vt3}, 7, v{vt3}")
    e(f"v_lshlrev_b32 v{vt3}, 4, v{vt3}")
    e(f"v_xor_b32 v{va_}, 64, v{vt3}")
    e(f"v_lshrrev_b32 v{vb_}, 3, v{vl}")
    e(f"v_mul_u32_u24 v{vd}, 1152, v{vb_}")
    e(f"v_add_u32 v{pDX[0]}, v{vd}, v{vt3}")
    e(f"v_add_u32 v{pDX[1]}, v{vd}, v{va_}")
    e("s_and_b32 s46, s20, 1")
    e("s_lshl_b32 s46, s46, 6")
    e(f"v_xor_b32 v{vt3}, s46, v{vt3}")
    e("s_lshl_b32 s46, s20, 3")
    e(f"v_add_u32 v{vb_}, s46, v{vb_}")
    e(f"v_lshl_add_u32 v{vDV[0]}, v{vb_}, 12, v{vt3}")
    e(f"v_add_u32 v{vDV[1]}, 0x40000, v{vDV[0]}")
    e("s_waitcnt lgkmcnt(0)")
    e(f"s_sub_u32 s47, {SZ_KV}, s44")
    mk_srd(k, 4, 40, off_sgpr=44, off_imm=WS['k'], size_sgpr=47)
    e(f"s_sub_u32 s47, {SZ_KV}, s49")
    mk_srd(k, 8, 40, off_sgpr=49, off_imm=WS['v'], size_sgpr=47)
    e(f"s_sub_u32 s47, {576*8192}, s44")
    mk_srd(k, 12, 42, off_sgpr=44, size_sgpr=47)
    e("s_mul_i32 s46, s22, 1152")
    if WS['xn']:
        mk_srd(k, 16, 40, off_sgpr=46, off_imm=WS['xn'], size=32 * 1152)
    else:
        mk_srd(k, 16, 40, off_sgpr=46, size=32 * 1152)
    e("s_lshl_b32 s33, s20, 12")
    vm_ops = []
    def vm_issue(tag): vm_ops.append(tag)
    def vm_wait_for(tag):
        idx = max(i for i, t in enumerate(vm_ops) if t == tag)
        return len(vm_ops) - 1 - idx
    def dma(kind, ldsbase, soff):
        o = []
        vv = {"K": vDK, "V": vDV, "W": pDW}[kind]
        srd = {"K": "s[4:7]", "V": "s[8:11]", "W": "s[12:15]"}[kind]
        for j in range(2):
            o.append([f"  s_add_u32 m0, s21, {ldsbase + 8192*j:#x}", "  s_nop 0",
                      f"  buffer_load_dwordx4 v{vv[j]}, {srd}, {soff} offen lds"])
        return o
    XSL = [KBASE + 2 * SLOT, XTRA]; WSL = [VBASE + 2 * SLOT, VBASE + 3 * SLOT]
    def tile_soff(kind, tile):
        return tile * 128 if kind == "V" else tile * 64 * 8192
    def issue_static(kind, tile, ldsbase, out=None):
        out = L if out is None else out
        out.append(f"  s_mov_b32 s46, {tile_soff(kind, tile):#x}")
        for g in dma(kind, ldsbase, "s46"):
            out.extend(g); vm_issue((kind, tile))
    def issue_qstage(u, out=None):
        out = L if out is None else out
        for j in range(4):
            out.append(f"  s_add_u32 m0, s33, {XSL[u%2] + 1024*j:#x}")
            out.append(f"  s_mov_b32 s46, {u*128 + 9216*j:#x}")
            out.append(f"  buffer_load_dwordx4 v{pDX[j%2]}, s[16:19], s46 offen lds")
            vm_issue(("Q", u))
        issue_static("W", u, WSL[u % 2], out)
        vm_ops[-1] = vm_ops[-2] = ("Q", u)
    issue_qstage(0); issue_qstage(1)
    vr_ = vt; vh = vt2
    e(f"v_bfe_u32 v{vr_}, v{vl}, 2, 2")
    e(f"v_lshrrev_b32 v{vh}, 5, v{vl}")
    e(f"v_bfe_u32 v{vt3}, v{vl}, 4, 1")
    e(f"v_lshlrev_b32 v{vt3}, 5, v{vt3}")
    e(f"v_and_b32 v{va_}, 3, v{vl}")
    e(f"v_lshl_add_u32 v{vt3}, v{va_}, 3, v{vt3}")
    e(f"v_lshl_add_u32 v{va_}, v{vh}, 3, v{vr_}")
    e(f"v_lshl_add_u32 v{va_}, v{va_}, 8, v{vt3}")
    for T in range(4):
        e(f"v_xor_b32 v{vt3}, {T}, v{vr_}")
        e(f"v_lshl_add_u32 v{vd}, v{vt3}, 6, v{va_}")
        e(f"v_add_u32 v{pWA[T]}, {WSL[0]:#x}, v{vd}")
    e(f"v_and_b32 v{va_}, 31, v{vl}")
    e(f"v_lshrrev_b32 v{vb_}, 1, v{va_}")
    e(f"v_xor_b32 v{vb_}, v{vb_}, v{vh}")
    e(f"v_and_b32 v{vb_}, 7, v{vb_}")
    e(f"v_lshlrev_b32 v{va_}, 7, v{va_}")
    for c in range(4):
        e(f"v_xor_b32 v{vt3}, {2*c}, v{vb_}")
        e(f"v_lshl_add_u32 v{vd}, v{vt3}, 4, v{va_}")
        e(f"v_add_u32 v{vVA[c]}, {VBASE:#x}, v{vd}")
        e(f"v_add_u32 v{vd}, s33, v{vd}")
        e(f"v_add_u32 v{pXA[c]}, {XSL[0]:#x}, v{vd}")
        e(f"v_add_u32 v{pXA[4+c]}, {XSL[1]:#x}, v{vd}")
    lq = LdsQ()
    fr = [(u, tq, T) for u in range(9) for tq in range(4) for T in range(4)]
    def w_reads(n):
        u, tq, T = fr[n]
        off = (u % 2) * SLOT + tq * 16 * 256
        r = AR + (n % 4) * 4
        return [f"  ds_read_b64_tr_b16 {vr(r,2)}, v{pWA[T]} offset:{off}",
                f"  ds_read_b64_tr_b16 {vr(r+2,2)}, v{pWA[T]} offset:{off+1024}"]
    def x_read(u, tq):
        return f"  ds_read_b128 {vr(BR+((u%2)*4+tq)*4,4)}, v{pXA[(u%2)*4+tq]}"
    seq = {}; xseq = {}
    LAW = 3
    e(f"s_waitcnt vmcnt({vm_wait_for(('Q',0))})")
    e("s_barrier")
    if DBG:
        e("s_memtime s[50:51]"); e("s_waitcnt lgkmcnt(0)"); e("v_writelane_b32 v30, s50, 1")
    L.append(x_read(0, 0)); xseq[(0, 0)] = lq.issue()
    for n in range(LAW):
        L.extend(w_reads(n)); seq[n] = lq.issue(2)
    for tq in range(1, 4):
        L.append(x_read(0, tq)); xseq[(0, tq)] = lq.issue()
    started = set()
    pend = []
    for n, (u, tq, T) in enumerate(fr):
        nn = n + LAW
        if nn < len(fr) and fr[nn][0] != fr[nn - 1][0]:
            un = fr[nn][0]
            e(f"s_waitcnt vmcnt({vm_wait_for(('Q',un))}) lgkmcnt(0)")
            lq.drain()
            e("s_barrier")
            for t2 in range(4):
                L.append(x_read(un, t2)); xseq[(un, t2)] = lq.issue()
            if un + 1 < 9:
                issue_qstage(un + 1, pend)
            if un == 5:
                issue_static("K", 0, KBASE, pend); issue_static("V", 0, VBASE, pend)
            if un == 7:
                issue_static("K", 1, KBASE + SLOT, pend); issue_static("V", 1, VBASE + SLOT, pend)
        lq.need(L, max(seq[n], xseq[(u, tq)]))
        a = O + 16 * T
        c = vr(a, 16) if T in started else "0"
        started.add(T)
        e(f"v_mfma_f32_32x32x16_bf16 {vr(a,16)}, {vr(AR+(n%4)*4,4)}, {vr(BR+((u%2)*4+tq)*4,4)}, {c}")
        if nn < len(fr):
            L.extend(w_reads(nn)); seq[nn] = lq.issue(2)
        L.extend(pend[:4]); pend = pend[4:]
    L.extend(pend)
    e(f"s_waitcnt vmcnt({vm_wait_for(('K',0))}) lgkmcnt(0)")
    e("s_barrier")
    if DBG:
        e("s_memtime s[50:51]"); e("s_waitcnt lgkmcnt(0)"); e("v_writelane_b32 v30, s50, 2")
    for kind, tile in [("K", 2), ("V", 2), ("K", 3)]:
        issue_static(kind, tile, (KBASE if kind == "K" else VBASE) + tile * SLOT)
    e(f"v_and_b32 v{vt}, 31, v{vl}")
    e(f"v_lshlrev_b32 v{vt}, 8, v{vt}")
    e(f"v_lshrrev_b32 v{vt2}, 5, v{vl}")
    e(f"v_xor_b32 v{vt2}, v{vt2}, v{vl}")
    e(f"v_and_b32 v{vt2}, 15, v{vt2}")
    for c in range(8):
        e(f"v_xor_b32 v{vt3}, {2*c}, v{vt2}")
        e(f"v_lshl_add_u32 v{vKA[c]}, v{vt3}, 4, v{vt}")
    def k_read(slot, n):
        sub, c = n // 8, n % 8
        return f"  ds_read_b128 {vr(FR+(n%R)*4,4)}, v{vKA[c]} offset:{KBASE + slot*SLOT + sub*8192}"
    lq = LdsQ()
    seq = {}
    for n in range(R):
        L.append(k_read(0, n)); seq[n] = lq.issue()
    e(f"v_and_b32 v{vmk}, 31, v{vl}")
    e("s_and_b32 s46, s22, 32")
    e(f"v_add_u32 v{vmk}, s46, v{vmk}")
    e(f"v_lshrrev_b32 v{vt2}, 5, v{vl}")
    e(f"v_lshlrev_b32 v{vt2}, 2, v{vt2}")
    e(f"v_sub_u32 v{vmk}, v{vmk}, v{vt2}")
    e(f"v_mov_b32 v{vneg}, 0xff800000")
    e(f"s_mov_b32 s46, {f2u(128 ** -0.5 * 1.4426950408889634):#x}")
    for T in range(4):
        for i in range(16):
            e(f"v_mul_f32 v{O+16*T+i}, s46, v{O+16*T+i}")
        for ee in range(2):
            d = Q + (2 * T + ee) * 4; a = O + 16 * T + 4 * ee
            e(f"v_cvt_pk_bf16_f32 v{d}, v{a}, v{a+1}")
            e(f"v_cvt_pk_bf16_f32 v{d+1}, v{a+2}, v{a+3}")
            e(f"v_cvt_pk_bf16_f32 v{d+2}, v{a+8}, v{a+9}")
            e(f"v_cvt_pk_bf16_f32 v{d+3}, v{a+10}, v{a+11}")
    e(f"v_mov_b32 v{vsum}, 0")

    def qk_mfma(sb, n, first=False):
        sub, c = n // 8, n % 8
        a = S[sb] + 16 * sub
        cc = vr(a, 16) if c else ("0" if first else vr(NM, 16))
        return f"  v_mfma_f32_32x32x16_bf16 {vr(a,16)}, {vr(FR+(n%R)*4,4)}, {vr(Q+4*c,4)}, {cc}"
    def v_read(slot, m):
        ks, T = m // 4, m % 4
        return f"  ds_read_b128 {vr(FR+(m%R)*4,4)}, v{vVA[ks]} offset:{slot*SLOT + T*4096}"
    def preg(sb, ks):
        return S[sb] + 16 * (ks >> 1) + 4 * (ks & 1)
    def pv_mfma(sb, m):
        ks, T = m // 4, m % 4
        a = O + 16 * T
        return f"  v_mfma_f32_32x32x16_bf16 {vr(a,16)}, {vr(FR+(m%R)*4,4)}, {vr(preg(sb,ks),4)}, {vr(a,16)}"
    def exp_ops(sb, ks):
        b = preg(sb, ks)
        src = [b, b + 2, b + 8, b + 10]
        ops = []
        pend = []
        for j in range(4):
            x, y = src[j], src[j] + 1
            ops.append((2, f"  v_exp_f32 v{x}, v{x}"))
            ops.append((2, f"  v_exp_f32 v{y}, v{y}"))
            ops.extend(pend)
            pend = [(1, f"  v_add_f32 v{vsum}, v{vsum}, v{x}"),
                    (1, f"  v_add_f32 v{vsum}, v{vsum}, v{y}"),
                    (1, f"  v_cvt_pk_bf16_f32 v{b+j}, v{x}, v{y}")]
        return ops, pend
    def exp_all(sb, kss):
        ops = []; pend = []
        marks = {}
        for ks in kss:
            o, p = exp_ops(sb, ks)
            ops.extend(o[:2]); ops.extend(pend); ops.extend(o[2:])
            pend = p
        ops.append((1, "  s_nop 0"))
        ops.extend(pend)
        return ops
    def max_ops(sb):
        ops = []
        for sub, acc in ((0, va_), (1, vb_)):
            b = S[sb] + 16 * sub
            ops.append((1, f"  v_max3_f32 v{acc}, v{b}, v{b+1}, v{b+2}"))
            for j in range(3, 15, 2):
                ops.append((1, f"  v_max3_f32 v{acc}, v{acc}, v{b+j}, v{b+j+1}"))
        ops.append((1, f"  v_max3_f32 v{va_}, v{va_}, v{S[sb]+15}, v{S[sb]+31}"))
        ops.append((1, f"  v_max_f32 v{va_}, v{va_}, v{vb_}"))
        ops.append((1, f"  v_cmp_lt_f32 vcc, s{STH}, v{va_}"))
        return ops
    def xhalf_max():
        return [f"  v_mov_b32 v{vb_}, v{va_}", "  s_nop 1", f"  v_permlane32_swap_b32 v{va_}, v{vb_}", "  s_nop 1",
                f"  v_max_f32 v{va_}, v{va_}, v{vb_}"]
    def mask_block(sb):
        o = ["  s_nop 7", "  s_nop 3"]
        items = []
        for sub in range(2):
            for i in range(16):
                g, r = i >> 2, i & 3
                items.append((S[sb] + 16 * sub + i, 32 * sub + 8 * g + r))
        pairs = [34, 36, 38]
        n = len(items)
        for i in range(n + 2):
            if i < n:
                o.append(f"  v_cmp_gt_i32 s[{pairs[i%3]}:{pairs[i%3]+1}], {items[i][1]}, v{vmk}")
            if i >= 2:
                reg = items[i - 2][0]; p = pairs[(i - 2) % 3]
                if i >= n: o.append("  s_nop 0")
                o.append(f"  v_cndmask_b32 v{reg}, v{reg}, v{vneg}, s[{p}:{p+1}]")
        return o
    def rare_block(sn):
        o = [f"  s_cbranch_vccz 2f", "  s_nop 7", "  s_nop 3"] + xhalf_max() + [
             f"  v_max_f32 v{va_}, 0, v{va_}", f"  v_sub_f32 v{vd}, 0, v{va_}", f"  v_exp_f32 v{vd}, v{vd}"]
        for i in range(32):
            o.append(f"  v_sub_f32 v{S[sn]+i}, v{S[sn]+i}, v{va_}")
        for i in range(16):
            o.append(f"  v_sub_f32 v{NM+i}, v{NM+i}, v{va_}")
        for i in range(64):
            o.append(f"  v_mul_f32 v{O+i}, v{O+i}, v{vd}")
        o.append(f"  v_mul_f32 v{vsum}, v{vsum}, v{vd}")
        o.append("  s_nop 1")
        o.append("2:")
        return o
    def barrier_block(lq, out):
        if DBG:
            out.append("  s_memtime s[50:51]")
        out.append("  s_waitcnt vmcnt(8) lgkmcnt(0)")
        out.append("  s_barrier")
        if DBG:
            out.append("  s_memtime s[52:53]")
            out.append("  s_add_u32 m0, s25, 4")
            out.append("  s_nop 0")
            out.append("  v_writelane_b32 v30, s50, m0")
            out.append("  s_waitcnt lgkmcnt(0)")
            out.append("  v_writelane_b32 v31, s52, m0")
        lq.drain()
    def dma_after(sslot):
        g = []
        kk = dma("K", KBASE + sslot * SLOT, "s26")
        vv = dma("V", VBASE + ((sslot + 3) % 4) * SLOT, "s27")
        for x in kk + vv:
            g.append([x[0], x[2]])
        g[3] += ["  s_add_u32 s26, s26, 0x80000", "  s_add_u32 s27, s27, 128"]
        return g

    for n in range(16):
        lq.need(L, seq[n])
        L.append(qk_mfma(0, n, first=True))
        if n + R < 16:
            L.append(k_read(0, n + R)); seq[n + R] = lq.issue()
        for i in range(4):
            e(f"v_mov_b32 v{O+4*n+i}, 0")
    e("s_cmp_eq_u32 s23, 0")
    e("s_cbranch_scc0 6f")
    L.extend(mask_block(0))
    k.lab("6")
    e("s_nop 7"); e("s_nop 3")
    for c_, ins in max_ops(0):
        L.append(ins)
    L.extend(xhalf_max())
    for i in range(32):
        e(f"v_sub_f32 v{S[0]+i}, v{S[0]+i}, v{va_}")
    for i in range(16):
        e(f"v_sub_f32 v{NM+i}, 0, v{va_}")
    e("s_mov_b32 s25, 0")
    e(f"s_mov_b32 s26, {4*64*8192:#x}")
    e(f"s_mov_b32 s27, {3*128:#x}")
    barrier_block(lq, L)
    for n in range(R):
        L.append(k_read(1, n))
    lfin = [f"{name}_fin{p}" for p in range(4)]
    lbody = [f"{name}_body{p}" for p in range(4)]
    e("s_cmp_eq_u32 s23, 0")
    e(f"s_cbranch_scc1 {lfin[0]}")

    for p in range(4):
        k.lab(lbody[p])
        sb = p % 2; sn = (p + 1) % 2
        kslot = (p + 1) % 4; vslot = p
        lq = LdsQ()
        fseq = {}
        for n in range(R): fseq[n] = lq.issue()
        valu = exp_all(sb, range(4))
        mops = max_ops(sn)
        vi = 0; spent = 0.0
        post = dma_after(p)
        for g in range(32):
            lq.need(L, fseq[min(g + (3 - g % 4), 31) if g >= 4 else min(g + (1 - g % 2), 31)])
            if g in DGAPS:
                L.append(post[0][0])
            L.append(qk_mfma(sn, g) if g < 16 else pv_mfma(sb, g - 16))
            n = g + R
            if n < 16:
                L.append(k_read(kslot, n)); fseq[n] = lq.issue()
            elif n < 32:
                L.append(v_read(vslot, n - 16)); fseq[n] = lq.issue()
            elif g > GBAR:
                L.append(k_read((p + 2) % 4, n - 32)); lq.issue()
            if g == 17:
                e(f"s_add_u32 s25, s25, 1")
                e("s_cmp_eq_u32 s25, s23")
                e("s_cbranch_scc0 6f")
                L.extend(mask_block(sn))
                k.lab("6")
                valu += mops
            if g == GBAR:
                barrier_block(lq, L)
                for n in range(GBAR + R - 31):
                    L.append(k_read((p + 2) % 4, n)); lq.issue()
            if g in DGAPS:
                L.extend(post.pop(0)[1:])
            target = RATE * (g + 1)
            while vi < len(valu) and (spent < target or g == 31):
                c_, ins = valu[vi]; vi += 1
                L.append(ins); spent += c_
        assert vi == len(valu) and not post
        L.extend(rare_block(sn))
        e("s_cmp_eq_u32 s25, s23")
        e(f"s_cbranch_scc1 {lfin[(p+1)%4]}")
        if p == 3:
            e(f"s_branch {lbody[0]}")
    lload = name + "_loader"
    for p in range(4):
        k.lab(lfin[p])
        sb = p % 2; vslot = p
        e("s_waitcnt lgkmcnt(0)")
        lq = LdsQ()
        vseq = {}
        for m in range(R):
            L.append(v_read(vslot, m)); vseq[m] = lq.issue()
        for c_, ins in exp_all(sb, [0]): L.append(ins)
        e("s_nop 1")
        post = dma_after(p)
        for m in range(16):
            lq.need(L, vseq[m])
            if m % 4 == 1: L.append(post[0][0])
            L.append(pv_mfma(sb, m))
            if m % 4 == 1: L.extend(post.pop(0)[1:])
            if m + R < 16:
                L.append(v_read(vslot, m + R)); vseq[m + R] = lq.issue()
            ks = m // 4 + 1
            if ks < 4:
                if m % 4 == 0:
                    rest = exp_all(sb, [ks])
                n3 = (len(rest) + 2) // 3
                for c_, ins in rest[(m % 4) * n3: (m % 4 + 1) * n3]:
                    L.append(ins)
                if m % 4 == 3: e("s_nop 1")
        if p < 3: e(f"s_branch {lload}")
    k.lab(lload)
    lepi = name + "_epi"
    e("s_add_u32 s25, s25, 1")
    e("s_cmp_ge_u32 s25, s24")
    e(f"s_cbranch_scc1 {lepi}")
    lq = LdsQ()
    barrier_block(lq, L)
    e("s_and_b32 s47, s25, 3")
    e("s_lshl_b32 s47, s47, 14")
    e("s_add_u32 s47, s47, s21")
    for j in range(2):
        e(f"s_add_u32 m0, s47, {KBASE + 8192*j:#x}")
        e("s_nop 0")
        e(f"buffer_load_dwordx4 v{vDK[j]}, s[4:7], s26 offen lds")
    e("s_add_u32 s46, s25, 3")
    e("s_and_b32 s47, s46, 3")
    e("s_lshl_b32 s47, s47, 14")
    e("s_add_u32 s47, s47, s21")
    for j in range(2):
        e(f"s_add_u32 m0, s47, {VBASE + 8192*j:#x}")
        e("s_nop 0")
        e(f"buffer_load_dwordx4 v{vDV[j]}, s[8:11], s27 offen lds")
    e("s_add_u32 s26, s26, 0x80000")
    e("s_add_u32 s27, s27, 128")
    e(f"s_branch {lload}")
    k.lab(lepi)
    e("s_waitcnt vmcnt(0)")
    e("s_barrier")
    e("s_lshl_b32 s46, s22, 13")
    e("s_add_u32 s46, s46, s44")
    e(f"s_sub_u32 s47, {SZ_KV}, s46")
    mk_srd(k, 16, 40, off_sgpr=46, off_imm=WS['ctx'], size_sgpr=47)
    e(f"v_mov_b32 v{vb_}, v{vsum}")
    e("s_lshl_b32 s33, s20, 13")
    e("s_nop 0")
    e(f"v_permlane32_swap_b32 v{vsum}, v{vb_}")
    e("s_nop 1")
    e(f"v_add_f32 v{vsum}, v{vsum}, v{vb_}")
    e(f"v_rcp_f32 v{vsum}, v{vsum}")
    for c in range(8):
        e(f"v_add_u32 v{vKA[c]}, s33, v{vKA[c]}")
    e(f"v_lshlrev_b32 v{vt}, 4, v{vl}")
    e(f"v_add_u32 v{vt}, s33, v{vt}")
    e(f"v_lshrrev_b32 v{vt2}, 4, v{vl}")
    for T in range(4):
        for ee in range(2):
            a = O + 16 * T + 4 * ee
            for i in (0, 1, 2, 3, 8, 9, 10, 11):
                e(f"v_mul_f32 v{a+i}, v{a+i}, v{vsum}")
            e(f"v_cvt_pk_bf16_f32 v{a}, v{a}, v{a+1}")
            e(f"v_cvt_pk_bf16_f32 v{a+1}, v{a+2}, v{a+3}")
            e(f"v_cvt_pk_bf16_f32 v{a+2}, v{a+8}, v{a+9}")
            e(f"v_cvt_pk_bf16_f32 v{a+3}, v{a+10}, v{a+11}")
            e(f"ds_write_b128 v{vKA[2*T+ee]}, {vr(a,4)}")
    for jj in range(4):
        e(f"v_add_u32 v{vt3}, {4*jj}, v{vt2}")
        e(f"v_xor_b32 v{vd}, v{vt3}, v{vl}")
        e(f"v_and_b32 v{vd}, 15, v{vd}")
        e(f"v_lshlrev_b32 v{vd}, 4, v{vd}")
        e(f"v_lshl_add_u32 v{vVA[jj]}, v{vt3}, 13, v{vd}")
    e("s_waitcnt lgkmcnt(0)")
    for j in range(8):
        e(f"ds_read_b128 {vr(S[0]+4*j,4)}, v{vt} offset:{1024*j}")
    e(f"s_mov_b32 s46, {16*8192:#x}")
    for j in range(8):
        e(f"s_waitcnt lgkmcnt({7-j})")
        so = "0" if j < 4 else "s46"
        e(f"buffer_store_dwordx4 {vr(S[0]+4*j,4)}, v{vVA[j%4]}, s[16:19], {so} offen")
    if DBG:
        e("s_waitcnt vmcnt(0)")
        e("s_memtime s[50:51]")
        e("s_waitcnt lgkmcnt(0)")
        e("v_writelane_b32 v30, s50, 3")
        e("s_lshl_b32 s46, s2, 3")
        e("s_add_u32 s46, s46, s20")
        e("s_lshl_b32 s46, s46, 9")
        mk_srd(k, 16, 40, off_sgpr=46, off_imm=DBG_OFF, size=512)
        e(f"v_lshlrev_b32 v{vt}, 2, v{vl}")
        e(f"buffer_store_dword v30, v{vt}, s[16:19], 0 offen")
        e(f"buffer_store_dword v31, v{vt}, s[16:19], 0 offen offset:256")
    k.lab(lend)
    e("s_endpgm")
    return k, LDS_TOTAL
```

```python
from gen_common import *
import os
GDBG = os.environ.get("GEMM_DBG", "")
DBG_OFF = 200 * 1024 * 1024

def compress_loop(k, epochs, period, scount):
    n = len(epochs)
    best = (0, 0)
    for st in range(n):
        reps = 1
        while st + (reps + 1) * period <= n and \
                epochs[st + reps * period: st + (reps + 1) * period] == epochs[st: st + period]:
            reps += 1
        if reps > best[0]:
            best = (reps, st)
    reps, st = best
    if reps < 2:
        for ep in epochs:
            k.L.extend(ep)
        return
    for ep in epochs[:st]:
        k.L.extend(ep)
    lab = k.newlab("loop")
    k.e(f"s_mov_b32 s{scount}, {reps}")
    k.lab(lab)
    for ep in epochs[st: st + period]:
        k.L.extend(ep)
    k.e(f"s_sub_u32 s{scount}, s{scount}, 1")
    k.e(f"s_cmp_lg_u32 s{scount}, 0")
    k.e(f"s_cbranch_scc1 {lab}")
    for ep in epochs[st + reps * period:]:
        k.L.extend(ep)


def gen_gemm(name, BM, BN, WM, WN, WK, NS, nst, nwg, mapfn, xperm, epi, ldx, ldw, pre_hook=None, LA=8, loop=True, epi_alt=None):
    assert WM * WN * WK == 8
    k = Kern(name)
    k.uses(52)
    TM = BM // WM // 16
    TN = BN // WN // 16
    XB = BM * 128
    WB = 64 * BN * 2
    SB = XB + WB
    nA = BM // 8; nB = BN // 8
    T = nA + nB
    nmin = T // 8; nextra = T % 8
    lds = NS * SB
    k.e(f"s_cmp_ge_u32 s2, {nwg}")
    lend = name + "_end"
    k.e(f"s_cbranch_scc1 {lend}")
    va = VAlloc(k, 1)
    vl = va.get(); vt = va.get(); vt2 = va.get(); vt3 = va.get()
    dbg = (GDBG == name)
    vst = va.get() if dbg else None
    def stamp(out, idx):
        if not dbg: return
        out.append("  s_memtime s[50:51]")
        out.append("  s_waitcnt lgkmcnt(0)")
        if idx is None:
            out.append("  s_add_u32 s52, s52, 1")
            out.append("  s_mov_b32 m0, s52")
            out.append("  s_nop 0")
            out.append(f"  v_writelane_b32 v{vst}, s50, m0")
        else:
            out.append(f"  v_writelane_b32 v{vst}, s50, {idx}")
    if dbg:
        k.uses(56)
        k.e(f"v_mov_b32 v{vst}, 0")
        k.e("s_mov_b32 s52, 3")
        stamp(k.L, 0)
    k.e(f"v_and_b32 v{vl}, 63, v0")
    k.e(f"v_lshrrev_b32 v{vt}, 6, v0")
    k.e("s_nop 0")
    k.e(f"v_readfirstlane_b32 s20, v{vt}")
    mapfn(k)
    k.e("s_lshl_b32 s21, s20, 10")
    k.e(f"s_and_b32 s22, s20, {WN-1}")
    k.e(f"s_lshr_b32 s23, s20, {WN.bit_length()-1}")
    k.e(f"s_and_b32 s24, s23, {WM-1}")
    k.e(f"s_lshr_b32 s25, s23, {WM.bit_length()-1}")
    SWN, SWM, SKG = 22, 24, 25
    assert nA % 8 == 0
    jA = nA // 8
    pieces = []
    jB = (nB + 7) // 8
    for j in range(jA): pieces.append(("A", j))
    for j in range(jB): pieces.append(("B", j))
    extra = None
    if nextra:
        extra = pieces.pop()
    assert len(pieces) == nmin
    voff = {}
    k.e(f"s_and_b32 s28, s20, 1")
    k.e(f"s_lshl_b32 s28, s28, 2")
    k.e(f"v_lshrrev_b32 v{vt}, 4, v{vl}")
    k.e(f"v_add_u32 v{vt}, s28, v{vt}")
    k.e(f"v_xor_b32 v{vt}, v{vt}, v{vl}")
    k.e(f"v_and_b32 v{vt}, 7, v{vt}")
    k.e(f"v_lshlrev_b32 v{vt}, 4, v{vt}")
    k.e(f"v_lshrrev_b32 v{vt2}, 3, v{vl}")
    k.e(f"s_lshl_b32 s28, s20, 3")
    k.e(f"v_add_u32 v{vt2}, s28, v{vt2}")
    k.e(f"s_mov_b32 s28, {ldx}")
    k.e(f"v_mul_lo_u32 v{vt2}, v{vt2}, s28")
    for j in range(jA):
        r = va.get(); voff[("A", j)] = r
        if j == 0:
            k.e(f"v_add_u32 v{r}, v{vt2}, v{vt}")
        else:
            k.e(f"v_add_u32 v{r}, {64*j*ldx:#x}, v{voff[('A',0)]}")
    k.e(f"s_mov_b32 s29, {ldw}")
    if BN == 256:
        k.e(f"v_lshrrev_b32 v{vt2}, 5, v{vl}")
        k.e(f"s_lshl_b32 s28, s20, 1")
        k.e(f"v_add_u32 v{vt2}, s28, v{vt2}")
        k.e(f"v_and_b32 v{vt}, 3, v{vt2}")
        k.e(f"v_lshrrev_b32 v{vt3}, 3, v{vt2}")
        k.e(f"v_lshl_or_b32 v{vt}, v{vt3}, 2, v{vt}")
        k.e(f"v_lshlrev_b32 v{vt}, 1, v{vt}")
        k.e(f"v_xor_b32 v{vt}, v{vt}, v{vl}")
        k.e(f"v_and_b32 v{vt}, 31, v{vt}")
        k.e(f"v_lshlrev_b32 v{vt}, 4, v{vt}")
        k.e(f"v_mul_lo_u32 v{vt2}, v{vt2}, s29")
        for j in range(jB):
            r = va.get(); voff[("B", j)] = r
            if j == 0:
                k.e(f"v_add_u32 v{r}, v{vt2}, v{vt}")
            else:
                k.e(f"v_add_u32 v{r}, {16*j*ldw:#x}, v{voff[('B',0)]}")
    else:
        CPR = BN // 8
        assert BN == 144
        for j in range(jB):
            r = va.get(); voff[("B", j)] = r
            k.e(f"s_lshl_b32 s28, s20, 6")
            k.e(f"s_add_u32 s28, s28, {512*j}")
            k.e(f"v_add_u32 v{vt}, s28, v{vl}")
            k.e(f"v_mul_u32_u24 v{vt2}, 3641, v{vt}")
            k.e(f"v_lshrrev_b32 v{vt2}, 16, v{vt2}")
            k.e(f"v_mul_u32_u24 v{vt3}, 18, v{vt2}")
            k.e(f"v_sub_u32 v{vt}, v{vt}, v{vt3}")
            k.e(f"v_lshlrev_b32 v{vt}, 4, v{vt}")
            if xperm == "nat":
                k.e(f"v_lshrrev_b32 v{vt3}, 1, v{vt2}")
                k.e(f"v_and_b32 v{vt3}, 4, v{vt3}")
                k.e(f"v_xor_b32 v{vt2}, v{vt2}, v{vt3}")
            k.e(f"v_mul_lo_u32 v{vt2}, v{vt2}, s29")
            k.e(f"v_add_u32 v{r}, v{vt2}, v{vt}")
    SOA, SOB = 30, 31
    k.e(f"s_mov_b32 s{SOA}, 0")
    k.e(f"s_mov_b32 s{SOB}, 0")

    def dma_ops(slot):
        ops = []
        allp = ([extra] if extra else []) + pieces
        for (kind, j) in allp:
            base = slot * SB + (0 if kind == "A" else XB) + 8192 * j
            g = [f"  s_add_u32 m0, s21, {base:#x}"]
            srd = "s[4:7]" if kind == "A" else "s[8:11]"
            so = SOA if kind == "A" else SOB
            ld = f"  buffer_load_dwordx4 v{voff[(kind,j)]}, {srd}, s{so} offen lds"
            if (kind, j) == extra:
                g = [f"  s_cmp_lt_u32 s20, {nextra}", "  s_cbranch_scc0 1f", g[0], "  s_nop 0", ld, "1:"]
            else:
                g = [g[0], "  s_nop 0", ld]
            ops.append(g)
        ops.append([f"  s_add_u32 s{SOA}, s{SOA}, 128", f"  s_add_u32 s{SOB}, s{SOB}, {64*ldw:#x}"])
        return ops
    q = va.get()
    k.e(f"v_lshrrev_b32 v{q}, 4, v{vl}")
    nks = 2 // WK
    vX = [va.get() for _ in range(nks)]
    k.e(f"v_and_b32 v{vt}, 15, v{vl}")
    k.e(f"v_lshrrev_b32 v{vt2}, 1, v{vt}")
    k.e(f"v_xor_b32 v{vt2}, v{vt2}, v{q}")
    if WK == 2:
        k.e(f"s_lshl_b32 s28, s{SKG}, 2")
        k.e(f"v_xor_b32 v{vt2}, s28, v{vt2}")
    k.e(f"v_lshlrev_b32 v{vt2}, 4, v{vt2}")
    k.e(f"s_mul_i32 s28, s{SWM}, {TM*16*128}")
    k.e(f"v_lshl_add_u32 v{vt2}, v{vt}, 7, v{vt2}")
    k.e(f"v_add_u32 v{vX[0]}, s28, v{vt2}")
    if nks == 2:
        k.e(f"v_xor_b32 v{vX[1]}, 64, v{vX[0]}")
    k.e(f"v_bfe_u32 v{vt}, v{vl}, 2, 2")
    k.e(f"v_and_b32 v{vt2}, 3, v{vl}")
    k.e(f"v_lshlrev_b32 v{vt2}, 3, v{vt2}")
    Wrd = {}
    if BN == 256:
        assert WK == 1
        vW = [va.get() for _ in range(TN)]
        k.e(f"v_lshl_add_u32 v{vt3}, v{q}, 3, v{vt}")
        k.e(f"v_lshl_add_u32 v{vt2}, v{vt3}, 9, v{vt2}")
        k.e(f"v_and_b32 v{vt3}, 1, v{q}")
        k.e(f"v_lshl_or_b32 v{vt3}, v{vt3}, 2, v{vt}")
        k.e(f"s_lshl_b32 s28, s{SWN}, 2")
        k.e(f"v_xor_b32 v{vt3}, s28, v{vt3}")
        for ti in range(TN):
            k.e(f"v_xor_b32 v{vt}, {ti}, v{vt3}")
            k.e(f"v_lshl_add_u32 v{vt}, v{vt}, 5, v{vt2}")
            k.e(f"v_add_u32 v{vW[ti]}, {XB:#x}, v{vt}")
        for ks in range(2):
            for ti in range(TN):
                for s in range(2):
                    Wrd[(ks, ti, s)] = (vW[ti], ks * 32 * 512 + s * 4 * 512)
    else:
        assert WN == 1
        RS = BN * 2
        if xperm == "nat":
            vW = [va.get() for _ in range(2)]
            k.e(f"v_and_b32 v{vt3}, 1, v{q}")
            k.e(f"v_lshl_add_u32 v{vt3}, v{vt3}, 2, v{vt}")
            k.e(f"v_lshl_add_u32 v{vt3}, v{q}, 3, v{vt3}")
            k.e(f"v_mul_u32_u24 v{vt}, {RS}, v{vt3}")
            k.e(f"v_add_u32 v{vW[0]}, v{vt}, v{vt2}")
            k.e(f"v_xor_b32 v{vt3}, 4, v{vt3}")
            k.e(f"v_mul_u32_u24 v{vt}, {RS}, v{vt3}")
            k.e(f"v_add_u32 v{vW[1]}, v{vt}, v{vt2}")
            sel = lambda s: (s, 0)
        else:
            vW = [va.get()]
            k.e(f"v_lshl_add_u32 v{vt3}, v{q}, 2, v{vt}")
            k.e(f"v_mul_u32_u24 v{vt}, {RS}, v{vt3}")
            k.e(f"v_add_u32 v{vW[0]}, v{vt}, v{vt2}")
            sel = lambda s: (0, s * 16 * RS)
        if WK == 2:
            k.e(f"s_mul_i32 s28, s{SKG}, {32*RS}")
            k.e(f"s_add_u32 s28, s28, {XB:#x}")
        else:
            k.e(f"s_mov_b32 s28, {XB:#x}")
        for r in vW:
            k.e(f"v_add_u32 v{r}, s28, v{r}")
        for ks in range(nks):
            for t in range(TN):
                for s in range(2):
                    i, imm = sel(s)
                    Wrd[(ks, t, s)] = (vW[i], imm + ks * 32 * RS + 32 * t)
    addr_regs = vX + vW
    hook_stores = 0
    if pre_hook:
        pre_hook(k, va, "load")
    for st in range(min(NS, nst)):
        for g in dma_ops(st):
            k.L.extend(g)
    if pre_hook:
        hook_stores = pre_hook(k, va, "compute", nmin * min(NS, nst) + (1 if False else 0))
    acc = va.get(TM * TN * 4, 4)
    def accr(mi, ti): return acc + (mi * TN + ti) * 4
    outerW = TN > TM
    NO, NI = (TN, TM) if outerW else (TM, TN)
    RO = (LA + NI - 1) // NI + 1
    while (NO * nks * NS) % RO: RO += 1
    oring = va.get(RO * 4, 4)
    NIS = 2 if (nks * NS) % 2 == 0 else 3
    iring = va.get(NIS * NI * 4, 4)
    LB = max(NI + LA - 4, 2)
    slots = []
    for st in range(nst):
        for ks in range(nks):
            for o in range(NO):
                for i in range(NI):
                    slots.append((st, ks, o, i))
    per_stage = nks * NO * NI
    def reads_for(kind, ks, idx, reg):
        isW = (kind == "o") == outerW
        if isW:
            out = []
            for s in range(2):
                v, imm = Wrd[(ks, idx, s)]
                out.append(f"  ds_read_b64_tr_b16 {vr(reg+2*s,2)}, v{v} offset:{imm}")
            return out
        return [f"  ds_read_b128 {vr(reg,4)}, v{vX[ks]} offset:{idx*2048}"]
    frags = []
    ocnt = 0; icnt = 0
    fmap = {}
    for st in range(nst):
        for ks in range(nks):
            base = (st * nks + ks) * NO * NI
            for i in range(NI):
                f = dict(kind="i", st=st, ks=ks, idx=i, first=base + i, last=base + (NO - 1) * NI + i,
                         reg=iring + ((icnt % NIS) * NI + i) * 4)
                frags.append(f); fmap[("i", st, ks, i)] = f
            icnt += 1
            for o in range(NO):
                f = dict(kind="o", st=st, ks=ks, idx=o, first=base + o * NI, last=base + o * NI + NI - 1,
                         reg=oring + (ocnt % RO) * 4)
                ocnt += 1
                frags.append(f); fmap[("o", st, ks, o)] = f
    lastuse = {}
    for f in sorted(frags, key=lambda f: f["first"]):
        p = f["first"] - LA
        if f["kind"] == "i":
            p = f["first"] - NO * NI + 1 + f["idx"] * max(1, (NO * NI - LA) // NI)
            p = min(p, f["first"] - LA)
        p = max(p, lastuse.get(f["reg"], -1) + 1)
        bar = f["st"] * per_stage - LB if f["st"] > 0 else 0
        p = max(p, bar, 0)
        f["pos"] = p
        lastuse[f["reg"]] = f["last"]
    bypos = {}
    for f in frags:
        bypos.setdefault(f["pos"], []).append(f)
    for p in bypos:
        bypos[p].sort(key=lambda f: f["first"])
    def body(trout, epi):
        epochs = []
        cur = []
        inflight = min(NS, nst) - 1
        cur.append(f"  s_waitcnt vmcnt({nmin*inflight + hook_stores})")
        cur.append("  s_barrier")
        stamp(cur, 1)
        issued = 0; done = 0
        pend_dma = []
        started = set()
        for u, (st, ks, o, i) in enumerate(slots):
            nxt = st + 1
            if nxt < nst and u == nxt * per_stage - LB:
                epochs.append(cur); cur = []
                infl = max(0, min(NS - 2, nst - 1 - nxt))
                cur.append(f"  s_waitcnt vmcnt({nmin*infl}) lgkmcnt(0)")
                done = issued
                cur.append("  s_barrier")
                stamp(cur, None)
                sl = nxt % NS
                delta = SB if sl != 0 else -(NS - 1) * SB
                for r in addr_regs:
                    if delta > 0:
                        cur.append(f"  v_add_u32 v{r}, {delta:#x}, v{r}")
                    else:
                        cur.append(f"  v_subrev_u32 v{r}, {-delta:#x}, v{r}")
                if st + NS < nst:
                    pend_dma = dma_ops(st % NS)
            for f in bypos.get(u, []):
                for ins in reads_for(f["kind"], f["ks"], f["idx"], f["reg"]):
                    cur.append(ins); issued += 1
                f["seq"] = issued
            fo = fmap[("o", st, ks, o)]; fi = fmap[("i", st, ks, i)]
            need = max(fo["seq"], fi["seq"])
            if need > done:
                n = min(issued - need, 15)
                cur.append(f"  s_waitcnt lgkmcnt({n})")
                done = issued - n
            fw, fx = (fo, fi) if outerW else (fi, fo)
            mi, ti = (i, o) if outerW else (o, i)
            a = accr(mi, ti)
            c = vr(a, 4) if (mi, ti) in started else "0"
            started.add((mi, ti))
            if trout:
                cur.append(f"  v_mfma_f32_16x16x32_bf16 {vr(a,4)}, {vr(fx['reg'],4)}, {vr(fw['reg'],4)}, {c}")
            else:
                cur.append(f"  v_mfma_f32_16x16x32_bf16 {vr(a,4)}, {vr(fw['reg'],4)}, {vr(fx['reg'],4)}, {c}")
            if pend_dma:
                cur.extend(pend_dma.pop(0))
        assert not pend_dma
        epochs.append(cur)
        if loop:
            compress_loop(k, epochs, NS, 33)
        else:
            for ep in epochs: k.L.extend(ep)
        k.e("s_nop 15")
        stamp(k.L, 2)
        keep = list(range(TM))
        env = dict(k=k, va=va, vl=vl, q=q, vt=vt, vt2=vt2, vt3=vt3, accr=accr, TM=TM, TN=TN, SWM=SWM, SWN=SWN, SKG=SKG)
        if WK == 2:
            H = TM // 2
            k.e("s_barrier")
            RB = H * TN * 1024
            assert 8 * RB <= lds, (8 * RB, lds)
            k.e(f"s_mul_i32 s28, s20, {RB}")
            k.e(f"v_lshlrev_b32 v{vt}, 4, v{vl}")
            k.e(f"v_add_u32 v{vt2}, s28, v{vt}")
            k.e(f"s_xor_b32 s28, s20, 4")
            k.e(f"s_mul_i32 s28, s28, {RB}")
            k.e(f"v_add_u32 v{vt3}, s28, v{vt}")
            l1 = k.newlab("kg1"); l2 = k.newlab("kgj")
            tmp = oring
            ntmp = (RO * 4 + NIS * NI * 4) // 4
            assert iring == oring + RO * 4
            for kg in range(2):
                if kg == 0:
                    k.e(f"s_cmp_eq_u32 s{SKG}, 0")
                    k.e(f"s_cbranch_scc0 {l1}")
                else:
                    k.lab(l1)
                send = range(H, TM) if kg == 0 else range(0, H)
                kp = range(0, H) if kg == 0 else range(H, TM)
                n = 0
                for mi in send:
                    for ti in range(TN):
                        k.e(f"ds_write_b128 v{vt2}, {vr(accr(mi,ti),4)} offset:{n*1024}")
                        n += 1
                k.e("s_waitcnt lgkmcnt(0)")
                k.e("s_barrier")
                lst = [(mi, ti) for mi in kp for ti in range(TN)]
                for b in range(0, len(lst), ntmp):
                    blk = lst[b: b + ntmp]
                    for j, (mi, ti) in enumerate(blk):
                        k.e(f"ds_read_b128 {vr(tmp+4*j,4)}, v{vt3} offset:{(b+j)*1024}")
                    for j, (mi, ti) in enumerate(blk):
                        k.e(f"s_waitcnt lgkmcnt({min(len(blk)-1-j,15)})")
                        for r in range(4):
                            k.e(f"v_add_f32 v{accr(mi,ti)+r}, v{accr(mi,ti)+r}, v{tmp+4*j+r}")
                epi(env, list(kp))
                if kg == 0:
                    k.e(f"s_branch {lend}_d")
        else:
            epi(env, keep)
    if epi_alt is None:
        body(False, epi)
    else:
        lalt = k.newlab("alt")
        k.e("s_cmp_eq_u32 s27, 0")
        k.e(f"s_cbranch_scc0 {lalt}")
        body(False, epi)
        k.e(f"s_branch {lend}_d")
        k.lab(lalt)
        body(True, epi_alt)
    k.lab(lend + "_d")
    if dbg:
        k.e("s_waitcnt vmcnt(0)")
        stamp(k.L, 3)
        k.e("s_lshl_b32 s46, s2, 3")
        k.e("s_add_u32 s46, s46, s20")
        k.e("s_lshl_b32 s46, s46, 9")
        mk_srd(k, 16, 40, off_sgpr=46, off_imm=DBG_OFF, size=512)
        k.e(f"v_lshlrev_b32 v{vt}, 2, v{vl}")
        k.e(f"buffer_store_dword v{vst}, v{vt}, s[16:19], 0 offen")
    k.lab(lend)
    k.e("s_endpgm")
    return k, lds
```

```python
from gen_common import *
from gen_gemm import gen_gemm

def k1_map(k):
    k.e(f"s_load_dwordx2 s[34:35], s[0:1], {KA['ckv']}")
    k.e(f"s_load_dwordx4 s[36:39], s[0:1], {KA['wuk']}")
    k.e(f"s_load_dwordx2 s[40:41], s[0:1], {KA['ws']}")
    k.e(f"s_load_dwordx2 s[42:43], s[0:1], {KA['x']}")
    k.e("s_and_b32 s44, s2, 7")
    k.e("s_lshr_b32 s45, s2, 3")
    k.e("s_and_b32 s46, s45, 3")
    k.e("s_lshl_b32 s44, s44, 2")
    k.e("s_add_u32 s44, s44, s46")
    k.e("s_lshr_b32 s45, s45, 2")
    k.e("s_waitcnt lgkmcnt(0)")
    k.e(f"s_mul_i32 s46, s45, {256*1024}")
    k.e(f"s_sub_u32 s47, {2048*1024}, s46")
    mk_srd(k, 4, 34, off_sgpr=46, size_sgpr=47)
    k.e("s_cmp_lt_u32 s44, 16")
    k.e("s_cselect_b32 s36, s36, s38")
    k.e("s_cselect_b32 s37, s37, s39")
    k.e("s_cselect_b32 s27, 0, 1")
    k.e(f"s_cselect_b32 s26, 0, {WS['v']-WS['k']:#x}")
    k.e(f"s_add_u32 s26, s26, {WS['k']:#x}")
    k.e("s_and_b32 s44, s44, 15")
    k.e("s_lshl_b32 s46, s44, 9")
    k.e(f"s_sub_u32 s47, {512*8192}, s46")
    mk_srd(k, 8, 36, off_sgpr=46, size_sgpr=47)
    k.e(f"s_mul_i32 s47, s45, {256*8192}")
    k.e("s_add_u32 s46, s46, s47")
    k.e(f"s_lshl_b32 s47, s44, 20")
    k.e(f"s_lshl_b32 s48, s45, 9")
    k.e("s_add_u32 s47, s47, s48")
    k.e("s_cmp_eq_u32 s27, 0")
    k.e("s_cselect_b32 s46, s46, s47")
    k.e(f"s_sub_u32 s47, {SZ_KV}, s46")
    k.e("s_add_u32 s46, s46, s26")
    mk_srd(k, 12, 40, off_sgpr=46, size_sgpr=47)

def k1_hook(k, va, phase, ndma=0):
    if phase == "load":
        st = {}
        k1_hook.st = st
        k.e("s_lshl_b32 s44, s2, 3")
        k.e("s_add_u32 s44, s44, s20")
        k.e("s_mul_i32 s44, s44, 1152")
        mk_srd(k, 16, 42, off_sgpr=44, size=1152)
        st["vo"] = va.get(); st["raw"] = va.get(6, 2)
        k.e(f"v_and_b32 v{st['vo']}, 63, v0")
        k.e(f"v_lshlrev_b32 v{st['vo']}, 3, v{st['vo']}")
        k.e(f"v_cmp_gt_u32 vcc, 384, v{st['vo']}")
        k.e("s_mov_b64 s[46:47], vcc")
        k.e("s_mov_b64 exec, vcc")
        for i in range(3):
            k.e(f"buffer_load_dwordx2 {vr(st['raw']+2*i,2)}, v{st['vo']}, s[16:19], 0 offen offset:{384*i}")
        k.e("s_mov_b64 exec, -1")
        return 0
    st = k1_hook.st
    save = va.n
    X = [va.get() for _ in range(12)]
    k.e(f"s_waitcnt vmcnt({ndma})")
    k.e("s_mov_b64 exec, s[46:47]")
    for i in range(6):
        k.e(f"v_lshlrev_b32 v{X[2*i]}, 16, v{st['raw']+i}")
        k.e(f"v_and_b32 v{X[2*i+1]}, 0xffff0000, v{st['raw']+i}")
    layernorm12(k, X, va, 46)
    for i in range(6):
        k.e(f"v_cvt_pk_bf16_f32 v{st['raw']+i}, v{X[2*i]}, v{X[2*i+1]}")
    mk_srd(k, 16, 40, off_sgpr=44, off_imm=WS['xn'], size=1152) if WS['xn'] else mk_srd(k, 16, 40, off_sgpr=44, size=1152)
    for i in range(3):
        k.e(f"buffer_store_dwordx2 {vr(st['raw']+2*i,2)}, v{st['vo']}, s[16:19], 0 offen offset:{384*i}")
    k.e("s_mov_b64 exec, -1")
    va.n = save
    return 3

def epi_kv(env, keep):
    k = env["k"]; vl = env["vl"]; q = env["q"]; vt = env["vt"]; vt2 = env["vt2"]; accr = env["accr"]
    TM, TN = env["TM"], env["TN"]
    k.e(f"v_and_b32 v{vt}, 15, v{vl}")
    k.e(f"v_lshlrev_b32 v{vt}, 13, v{vt}")
    k.e(f"v_lshl_add_u32 v{vt}, v{q}, 4, v{vt}")
    k.e(f"s_mul_i32 s28, s{env['SWM']}, {TM*16*8192}")
    k.e(f"s_mul_i32 s29, s{env['SWN']}, {TN*32}")
    k.e("s_add_u32 s28, s28, s29")
    k.e(f"v_add_u32 v{vt}, s28, v{vt}")
    for mi in keep:
        k.e(f"s_mov_b32 s28, {mi*16*8192:#x}")
        for pt in range(TN // 2):
            a = accr(mi, 2 * pt); b = accr(mi, 2 * pt + 1)
            k.e(f"v_cvt_pk_bf16_f32 v{a}, v{a}, v{a+1}")
            k.e(f"v_cvt_pk_bf16_f32 v{a+1}, v{a+2}, v{a+3}")
            k.e(f"v_cvt_pk_bf16_f32 v{a+2}, v{b}, v{b+1}")
            k.e(f"v_cvt_pk_bf16_f32 v{a+3}, v{b+2}, v{b+3}")
            k.e(f"buffer_store_dwordx4 {vr(a,4)}, v{vt}, s[12:15], s28 offen offset:{64*pt}")

def epi_vt(env, keep):
    k = env["k"]; vl = env["vl"]; q = env["q"]; vt = env["vt"]; accr = env["accr"]
    TM, TN = env["TM"], env["TN"]
    k.e(f"v_and_b32 v{vt}, 15, v{vl}")
    k.e(f"v_lshlrev_b32 v{vt}, 12, v{vt}")
    k.e(f"v_lshl_add_u32 v{vt}, v{q}, 4, v{vt}")
    k.e(f"s_mul_i32 s28, s{env['SWN']}, {TN*16*4096}")
    k.e(f"s_mul_i32 s29, s{env['SWM']}, {TM*32}")
    k.e("s_add_u32 s28, s28, s29")
    k.e(f"v_add_u32 v{vt}, s28, v{vt}")
    for ti in range(TN):
        k.e(f"s_mov_b32 s28, {ti*16*4096:#x}")
        for pm in range(TM // 2):
            a = accr(2 * pm, ti); b = accr(2 * pm + 1, ti)
            k.e(f"v_cvt_pk_bf16_f32 v{a}, v{a}, v{a+1}")
            k.e(f"v_cvt_pk_bf16_f32 v{a+1}, v{a+2}, v{a+3}")
            k.e(f"v_cvt_pk_bf16_f32 v{a+2}, v{b}, v{b+1}")
            k.e(f"v_cvt_pk_bf16_f32 v{a+3}, v{b+2}, v{b+3}")
            k.e(f"buffer_store_dwordx4 {vr(a,4)}, v{vt}, s[12:15], s28 offen offset:{64*pm}")

def mk_splitk_map(xname, ldx, wname, ksl, pname):
    def f(k):
        k.e(f"s_load_dwordx2 s[36:37], s[0:1], {KA[wname]}")
        k.e(f"s_load_dwordx2 s[40:41], s[0:1], {KA['ws']}")
        k.e("s_and_b32 s44, s2, 7")
        k.e("s_lshr_b32 s45, s2, 3")
        k.e("s_and_b32 s42, s45, 3")
        k.e("s_lshr_b32 s45, s45, 2")
        k.e("s_and_b32 s46, s44, 1")
        k.e("s_lshl_b32 s46, s46, 3")
        k.e("s_add_u32 s45, s45, s46")
        k.e("s_lshr_b32 s43, s44, 1")
        k.e("s_waitcnt lgkmcnt(0)")
        k.e(f"s_mul_i32 s46, s45, {128*ldx}")
        k.e(f"s_mul_i32 s47, s43, {ksl*2}")
        k.e("s_add_u32 s46, s46, s47")
        k.e(f"s_sub_u32 s47, {2048*ldx}, s46")
        mk_srd(k, 4, 40, off_sgpr=46, off_imm=WS[xname], size_sgpr=47)
        k.e(f"s_mul_i32 s46, s43, {ksl*1152}")
        k.e("s_mul_i32 s47, s42, 288")
        k.e("s_add_u32 s46, s46, s47")
        k.e(f"s_sub_u32 s47, {ksl*4*1152}, s46")
        mk_srd(k, 8, 36, off_sgpr=46, size_sgpr=47)
        k.e(f"s_mul_i32 s46, s43, {SZ_PART}")
        k.e(f"s_mul_i32 s47, s45, {128*2304}")
        k.e("s_add_u32 s46, s46, s47")
        k.e("s_mul_i32 s47, s42, 576")
        k.e("s_add_u32 s46, s46, s47")
        k.e(f"s_sub_u32 s47, {4*SZ_PART}, s46")
        mk_srd(k, 12, 40, off_sgpr=46, off_imm=WS[pname], size_sgpr=47)
    return f

def epi_part(env, keep):
    k = env["k"]; vl = env["vl"]; q = env["q"]; vt = env["vt"]; accr = env["accr"]
    TM, TN = env["TM"], env["TN"]
    k.e(f"v_and_b32 v{vt}, 15, v{vl}")
    k.e(f"v_mul_u32_u24 v{vt}, 2304, v{vt}")
    k.e(f"v_lshl_add_u32 v{vt}, v{q}, 4, v{vt}")
    k.e(f"s_mul_i32 s28, s{env['SWM']}, {TM*16*2304}")
    k.e(f"v_add_u32 v{vt}, s28, v{vt}")
    for mi in keep:
        k.e(f"s_mov_b32 s28, {mi*16*2304:#x}")
        for t in range(TN):
            k.e(f"buffer_store_dwordx4 {vr(accr(mi,t),4)}, v{vt}, s[12:15], s28 offen offset:{64*t}")

def k5_map(k):
    k.e(f"s_load_dwordx4 s[36:39], s[0:1], {KA['w1']}")
    k.e(f"s_load_dwordx2 s[40:41], s[0:1], {KA['ws']}")
    k.e("s_and_b32 s44, s2, 7")
    k.e("s_lshr_b32 s45, s2, 3")
    k.e("s_and_b32 s46, s45, 3")
    k.e("s_lshl_b32 s44, s44, 2")
    k.e("s_add_u32 s44, s44, s46")
    k.e("s_lshr_b32 s45, s45, 2")
    k.e("s_and_b32 s26, s44, 1")
    k.e("s_waitcnt lgkmcnt(0)")
    k.e(f"s_mul_i32 s46, s45, {256*1152}")
    k.e(f"s_sub_u32 s47, {2048*1152}, s46")
    mk_srd(k, 4, 40, off_sgpr=46, off_imm=WS['hn'], size_sgpr=47)
    k.e("s_mul_i32 s46, s44, 288")
    k.e(f"s_sub_u32 s47, {576*9216}, s46")
    mk_srd(k, 8, 36, off_sgpr=46, size_sgpr=47)
    k.e(f"s_sub_u32 s47, {4608*2}, s46")
    mk_srd(k, 16, 38, off_sgpr=46, size_sgpr=47)
    k.e("s_and_b32 s46, s46, 0xffffffc0")
    k.e(f"s_mul_i32 s47, s45, {256*9216}")
    k.e("s_add_u32 s46, s46, s47")
    k.e(f"s_sub_u32 s47, {SZ_ACT}, s46")
    mk_srd(k, 12, 40, off_sgpr=46, off_imm=WS['act'], size_sgpr=47)

def k5_hook(k, va, phase, ndma=0):
    if phase == "load":
        b = va.get(18, 2); t = va.get()
        k5_hook.b = b
        k.e(f"v_bfe_u32 v{t}, v0, 4, 2")
        k.e(f"v_lshlrev_b32 v{t}, 3, v{t}")
        for i in range(9):
            k.e(f"buffer_load_dwordx2 {vr(b+2*i,2)}, v{t}, s[16:19], 0 offen offset:{32*i}")
        return 0
    return 0

def epi_act(env, keep):
    k = env["k"]; vl = env["vl"]; q = env["q"]; vt = env["vt"]; vt2 = env["vt2"]; vt3 = env["vt3"]; accr = env["accr"]
    TM, TN = env["TM"], env["TN"]
    b = k5_hook.b
    k.e(f"v_and_b32 v{vt}, 15, v{vl}")
    k.e(f"v_mul_u32_u24 v{vt}, 9216, v{vt}")
    k.e(f"v_lshl_add_u32 v{vt}, v{q}, 4, v{vt}")
    k.e(f"s_mul_i32 s28, s{env['SWM']}, {TM*16*9216}")
    k.e(f"v_add_u32 v{vt}, s28, v{vt}")
    for t in range(TN):
        for h in range(2):
            k.e(f"v_lshlrev_b32 v{vt2}, 16, v{b+2*t+h}")
            k.e(f"v_and_b32 v{vt3}, 0xffff0000, v{b+2*t+h}")
            for mi in keep:
                a = accr(mi, t) + 2 * h
                k.e(f"v_add_f32 v{a}, v{a}, v{vt2}")
                k.e(f"v_add_f32 v{a+1}, v{a+1}, v{vt3}")
                k.e(f"v_max_f32 v{a}, 0, v{a}")
                k.e(f"v_max_f32 v{a+1}, 0, v{a+1}")
                k.e(f"v_mul_f32 v{a}, v{a}, v{a}")
                k.e(f"v_mul_f32 v{a+1}, v{a+1}, v{a+1}")
    lo = k.newlab("odd"); lj = k.newlab("join")
    k.e("s_cmp_eq_u32 s26, 0")
    k.e(f"s_cbranch_scc0 {lo}")
    for par in range(2):
        if par: k.lab(lo)
        for mi in keep:
            k.e(f"s_mov_b32 s28, {mi*16*9216:#x}")
            t = 0
            while t < TN:
                g = (t + par) >> 1; e = (t + par) & 1
                a = accr(mi, t)
                if e == 0 and t + 1 < TN:
                    bb = accr(mi, t + 1)
                    k.e(f"v_cvt_pk_bf16_f32 v{a}, v{a}, v{a+1}")
                    k.e(f"v_cvt_pk_bf16_f32 v{a+1}, v{a+2}, v{a+3}")
                    k.e(f"v_cvt_pk_bf16_f32 v{a+2}, v{bb}, v{bb+1}")
                    k.e(f"v_cvt_pk_bf16_f32 v{a+3}, v{bb+2}, v{bb+3}")
                    k.e(f"buffer_store_dwordx4 {vr(a,4)}, v{vt}, s[12:15], s28 offen offset:{64*g}")
                    t += 2
                else:
                    k.e(f"v_cvt_pk_bf16_f32 v{a}, v{a}, v{a+1}")
                    k.e(f"v_cvt_pk_bf16_f32 v{a+1}, v{a+2}, v{a+3}")
                    k.e(f"buffer_store_dwordx2 {vr(a,2)}, v{vt}, s[12:15], s28 offen offset:{64*g+8*e}")
                    t += 1
        if par == 0:
            k.e(f"s_branch {lj}")
    k.lab(lj)

def gen_reduce(name, S, pname, final):
    k = Kern(name); k.uses(48)
    lend = name + "_end"
    k.e("s_cmp_ge_u32 s2, 256")
    k.e(f"s_cbranch_scc1 {lend}")
    va = VAlloc(k, 1)
    vo = va.get(); vo2 = va.get(); vt = va.get()
    k.e(f"v_lshrrev_b32 v{vt}, 6, v0")
    k.e(f"s_load_dwordx2 s[40:41], s[0:1], {KA['ws']}")
    k.e(f"s_load_dwordx2 s[42:43], s[0:1], {KA['x']}")
    k.e(f"s_load_dwordx2 s[44:45], s[0:1], {KA['b2']}")
    k.e(f"s_load_dwordx2 s[36:37], s[0:1], {KA['out']}")
    k.e(f"v_readfirstlane_b32 s20, v{vt}")
    k.e("s_lshl_b32 s21, s2, 3")
    k.e("s_add_u32 s21, s21, s20")
    k.e("s_mul_i32 s22, s21, 1152")
    k.e("s_mul_i32 s23, s21, 2304")
    k.e(f"v_and_b32 v{vo}, 63, v0")
    k.e(f"v_lshlrev_b32 v{vo2}, 3, v{vo}")
    k.e(f"v_lshlrev_b32 v{vo}, 4, v{vo}")
    k.e(f"v_cmp_gt_u32 vcc, 384, v{vo2}")
    k.e("s_mov_b64 s[46:47], vcc")
    k.e("s_waitcnt lgkmcnt(0)")
    k.e(f"s_sub_u32 s24, {S*SZ_PART}, s23")
    mk_srd(k, 4, 40, off_sgpr=23, off_imm=WS[pname], size_sgpr=24)
    if final:
        mk_srd(k, 8, 40, off_sgpr=22, off_imm=WS['h'], size=1152)
        mk_srd(k, 12, 36, off_sgpr=22, size=1152)
        mk_srd(k, 16, 44, size=1152)
    else:
        mk_srd(k, 8, 42, off_sgpr=22, size=1152)
        mk_srd(k, 12, 40, off_sgpr=22, off_imm=WS['h'], size=1152)
        mk_srd(k, 16, 40, off_sgpr=22, off_imm=WS['hn'], size=1152)
    k.e("s_mov_b64 exec, s[46:47]")
    P = va.get(12 * S, 4)
    R = va.get(6, 2)
    B = va.get(6, 2)
    for s in range(S):
        k.e(f"s_mov_b32 s25, {s*SZ_PART:#x}")
        for i in range(3):
            k.e(f"buffer_load_dwordx4 {vr(P+12*s+4*i,4)}, v{vo}, s[4:7], s25 offen offset:{768*i}")
    for i in range(3):
        k.e(f"buffer_load_dwordx2 {vr(R+2*i,2)}, v{vo2}, s[8:11], 0 offen offset:{384*i}")
    if final:
        for i in range(3):
            k.e(f"buffer_load_dwordx2 {vr(B+2*i,2)}, v{vo2}, s[16:19], 0 offen offset:{384*i}")
    nrest = 3 + (3 if final else 0)
    for s in range(1, S):
        k.e(f"s_waitcnt vmcnt({nrest + 3*(S-1-s)})")
        for j in range(12):
            k.e(f"v_add_f32 v{P+j}, v{P+j}, v{P+12*s+j}")
    k.e("s_waitcnt vmcnt(0)")
    X = [P + j for j in range(12)]
    t0 = va.get(); t1 = va.get()
    for i in range(6):
        a, b = X[2 * i], X[2 * i + 1]
        bf16_round(k, a); bf16_round(k, b)
        if final:
            k.e(f"v_lshlrev_b32 v{t0}, 16, v{B+i}")
            k.e(f"v_and_b32 v{t1}, 0xffff0000, v{B+i}")
            k.e(f"v_add_f32 v{a}, v{a}, v{t0}")
            k.e(f"v_add_f32 v{b}, v{b}, v{t1}")
            bf16_round(k, a); bf16_round(k, b)
        k.e(f"v_lshlrev_b32 v{t0}, 16, v{R+i}")
        k.e(f"v_and_b32 v{t1}, 0xffff0000, v{R+i}")
        k.e(f"v_add_f32 v{a}, v{a}, v{t0}")
        k.e(f"v_add_f32 v{b}, v{b}, v{t1}")
        k.e(f"v_cvt_pk_bf16_f32 v{R+i}, v{a}, v{b}")
    for i in range(3):
        k.e(f"buffer_store_dwordx2 {vr(R+2*i,2)}, v{vo2}, s[12:15], 0 offen offset:{384*i}")
    if not final:
        for i in range(6):
            k.e(f"v_lshlrev_b32 v{X[2*i]}, 16, v{R+i}")
            k.e(f"v_and_b32 v{X[2*i+1]}, 0xffff0000, v{R+i}")
        layernorm12(k, X, va, 46)
        for i in range(6):
            k.e(f"v_cvt_pk_bf16_f32 v{B+i}, v{X[2*i]}, v{X[2*i+1]}")
        for i in range(3):
            k.e(f"buffer_store_dwordx2 {vr(B+2*i,2)}, v{vo2}, s[16:19], 0 offen offset:{384*i}")
    k.lab(lend)
    k.e("s_endpgm")
    return k, 0
```

```python
import sys, json
from gen_common import *
from gen_gemm import gen_gemm
from gen_kernels import *
try:
    from gen_attn import gen_attn
except ImportError:
    gen_attn = None

def build(opts):
    ks = []
    k1, l1 = gen_gemm("kvproj_kernel", 256, 256, 2, 4, 1, 2, 8, 256, k1_map, "nat", epi_kv, 1024, 8192, pre_hook=k1_hook, epi_alt=epi_vt)
    ks.append((k1, l1, 256, 512))
    if gen_attn:
        k2, l2 = gen_attn("attn_kernel")
        ks.append((k2, l2, 256, 512))
    k3, l3 = gen_gemm("oproj_kernel", 128, 144, 4, 1, 2, 3, 16, 256, mk_splitk_map("ctx", 8192, "wo", 1024, "p1"), "s32", epi_part, 8192, 1152)
    ks.append((k3, l3, 256, 512))
    k4, l4 = gen_reduce("red1_kernel", 4, "p1", False)
    ks.append((k4, l4, 256, 512))
    k5, l5 = gen_gemm("ffn1_kernel", 256, 144, 4, 1, 2, 3, 9, 256, k5_map, "nat", epi_act, 1152, 9216, pre_hook=k5_hook)
    ks.append((k5, l5, 256, 512))
    k6, l6 = gen_gemm("ffn2_kernel", 128, 144, 4, 1, 2, 3, 18, 256, mk_splitk_map("act", 9216, "w2", 1152, "p2"), "s32", epi_part, 9216, 1152)
    ks.append((k6, l6, 256, 512))
    k7, l7 = gen_reduce("red2_kernel", 4, "p2", True)
    ks.append((k7, l7, 256, 512))
    return ks

def main():
    out = sys.argv[1] if len(sys.argv) > 1 else f"cdna_kernels/{NAME}.s"
    ks = build({})
    hdr = open(f"cdna_kernels/{NAME}.s.ref").read().split("\n")
    lines = [l for l in hdr if l.startswith(";") and "@launch" not in l and "Override launch" not in l and "grid=ceil" not in l]
    txt = "\n".join(lines[:16]) + "\n"
    for k, lds, g, b in ks:
        txt += f"; @launch kernel={k.name} grid=({g},1,1) block=({b},1,1) lds={lds}\n"
    txt += '.amdgcn_target "amdgcn-amd-amdhsa--gfx950"\n.text\n'
    for k, *_ in ks:
        txt += k.text()
    txt += '.section .rodata,"a"\n'
    for k, *_ in ks:
        txt += k.desc()
    open(out, "w").write(txt)
    lay = {"xn": (WS["xn"], 2048, 576, "nat"), "k": (WS["k"], 2048, 4096, "s32"), "v": (WS["v"], 4096, 2048, "vt"),
           "ctx": (WS["ctx"], 2048, 4096, "s32"), "h": (WS["h"], 2048, 576, "nat"), "hn": (WS["hn"], 2048, 576, "nat"),
           "act": (WS["act"], 2048, 4608, "s32")}
    json.dump(lay, open("layout.json", "w"))
    for k, lds, g, b in ks:
        print(k.name, "vgpr", k.nv, "lds", lds, "instrs", len(k.L))
main()
```

```python
from gen_common import *
import struct, os
DBG = bool(os.environ.get("ATTN_DBG"))
DBG_OFF = 200 * 1024 * 1024

def f2u(x):
    return struct.unpack("<I", struct.pack("<f", x))[0]

KBASE = 0
VBASE = 65536
XTRA = 131072
SLOT = 16384
LDS_TOTAL = 163840

class LdsQ:
    def __init__(self): self.issued = 0; self.done = 0
    def issue(self, n=1):
        self.issued += n; return self.issued
    def need(self, out, seq):
        if seq > self.done:
            n = min(self.issued - seq, 15)
            out.append(f"  s_waitcnt lgkmcnt({n})")
            self.done = self.issued - n
    def drain(self): self.done = self.issued

def gen_attn(name, RATE=4.4, GBAR=26, DGAPS=(1, 5, 9, 13)):
    k = Kern(name); k.uses(56); k.usev(256)
    lend = name + "_end"
    e = k.e
    L = k.L
    vl = 1; vt = 2; vt2 = 3; vt3 = 4
    vKA = list(range(5, 13)); vVA = list(range(13, 17)); vDK = [17, 18]; vDV = [19, 20]
    vsum = 22; vmk = 23; vneg = 24; va_ = 25; vb_ = 26; vd = 28; vout = 29
    O = 32; S = [96, 128]; Q = 160; FR = 192; NM = 232
    R = 8
    pWA = list(range(96, 104)); pXA = list(range(104, 112)); pDX = [112, 113]; pDW = [114, 115]
    AR = 128; BR = 144
    STH = 31
    e("s_cmp_ge_u32 s2, 256")
    e(f"s_cbranch_scc1 {lend}")
    e(f"s_load_dwordx2 s[40:41], s[0:1], {KA['ws']}")
    e(f"s_load_dwordx2 s[42:43], s[0:1], {KA['wq']}")
    e(f"v_lshrrev_b32 v{vt}, 6, v0")
    e(f"v_and_b32 v{vl}, 63, v0")
    if DBG:
        e("s_memtime s[50:51]")
        e("v_mov_b32 v30, 0")
        e("v_mov_b32 v31, 0")
        e("s_memrealtime s[52:53]")
        e("s_waitcnt lgkmcnt(0)")
        e("v_writelane_b32 v30, s50, 0")
        e("v_writelane_b32 v31, s52, 0")
    e(f"v_readfirstlane_b32 s20, v{vt}")
    e("s_and_b32 s44, s2, 7")
    e("s_lshr_b32 s45, s2, 3")
    e("s_and_b32 s46, s45, 3")
    e("s_lshl_b32 s44, s44, 2")
    e("s_add_u32 s44, s44, s46")
    e("s_lshr_b32 s45, s45, 2")
    e("s_lshl_b32 s21, s20, 10")
    e("s_sub_u32 s46, 15, s45")
    e("s_lshl_b32 s46, s46, 7")
    e("s_lshl_b32 s47, s20, 5")
    e("s_add_u32 s46, s46, s47")
    e("s_lshl_b32 s47, s45, 7")
    e("s_sub_u32 s48, 7, s20")
    e("s_lshl_b32 s48, s48, 5")
    e("s_add_u32 s47, s47, s48")
    e("s_cmp_lt_u32 s20, 4")
    e("s_cselect_b32 s22, s46, s47")
    e("s_lshr_b32 s23, s22, 6")
    e("s_lshl_b32 s24, s45, 1")
    e("s_sub_u32 s24, 32, s24")
    e("s_sub_u32 s28, s24, 3")
    e("s_sub_u32 s29, s24, 4")
    e("s_lshl_b32 s49, s44, 19")
    e("s_lshl_b32 s44, s44, 8")
    e(f"s_mov_b32 s{STH}, {f2u(30.0):#x}")
    e(f"v_lshrrev_b32 v{vt}, 4, v{vl}")
    e("s_lshl_b32 s46, s20, 2")
    e(f"v_add_u32 v{vt2}, s46, v{vt}")
    e(f"v_xor_b32 v{vt3}, v{vt2}, v{vl}")
    e(f"v_and_b32 v{vt3}, 15, v{vt3}")
    e(f"v_lshlrev_b32 v{vt3}, 4, v{vt3}")
    e(f"v_lshl_add_u32 v{vDK[0]}, v{vt2}, 13, v{vt3}")
    e(f"v_add_u32 v{vDK[1]}, 0x40000, v{vDK[0]}")
    e(f"v_lshlrev_b32 v{vt3}, 2, v{vt}")
    e(f"v_xor_b32 v{vt3}, v{vt3}, v{vl}")
    e(f"v_and_b32 v{vt3}, 15, v{vt3}")
    e(f"v_lshlrev_b32 v{vt3}, 4, v{vt3}")
    e(f"v_lshl_add_u32 v{pDW[0]}, v{vt2}, 13, v{vt3}")
    e(f"v_add_u32 v{pDW[1]}, 0x40000, v{pDW[0]}")
    e(f"v_xor_b32 v{vt3}, v{vt}, v{vl}")
    e(f"v_and_b32 v{vt3}, 7, v{vt3}")
    e(f"v_lshlrev_b32 v{vt3}, 4, v{vt3}")
    e(f"v_xor_b32 v{va_}, 64, v{vt3}")
    e(f"v_lshrrev_b32 v{vb_}, 3, v{vl}")
    e(f"v_mul_u32_u24 v{vd}, 1152, v{vb_}")
    e(f"v_add_u32 v{pDX[0]}, v{vd}, v{vt3}")
    e(f"v_add_u32 v{pDX[1]}, v{vd}, v{va_}")
    e("s_and_b32 s46, s20, 1")
    e("s_lshl_b32 s46, s46, 6")
    e(f"v_xor_b32 v{vt3}, s46, v{vt3}")
    e("s_lshl_b32 s46, s20, 3")
    e(f"v_add_u32 v{vb_}, s46, v{vb_}")
    e(f"v_lshl_add_u32 v{vDV[0]}, v{vb_}, 12, v{vt3}")
    e(f"v_add_u32 v{vDV[1]}, 0x40000, v{vDV[0]}")
    e("s_waitcnt lgkmcnt(0)")
    e(f"s_sub_u32 s47, {SZ_KV}, s44")
    mk_srd(k, 4, 40, off_sgpr=44, off_imm=WS['k'], size_sgpr=47)
    e(f"s_sub_u32 s47, {SZ_KV}, s49")
    mk_srd(k, 8, 40, off_sgpr=49, off_imm=WS['v'], size_sgpr=47)
    e(f"s_sub_u32 s47, {576*8192}, s44")
    mk_srd(k, 12, 42, off_sgpr=44, size_sgpr=47)
    e("s_mul_i32 s46, s22, 1152")
    if WS['xn']:
        mk_srd(k, 16, 40, off_sgpr=46, off_imm=WS['xn'], size=32 * 1152)
    else:
        mk_srd(k, 16, 40, off_sgpr=46, size=32 * 1152)
    e("s_lshl_b32 s33, s20, 12")
    vm_ops = []
    def vm_issue(tag): vm_ops.append(tag)
    def vm_wait_for(tag):
        idx = max(i for i, t in enumerate(vm_ops) if t == tag)
        return len(vm_ops) - 1 - idx
    def dma(kind, ldsbase, soff):
        o = []
        vv = {"K": vDK, "V": vDV, "W": pDW}[kind]
        srd = {"K": "s[4:7]", "V": "s[8:11]", "W": "s[12:15]"}[kind]
        for j in range(2):
            o.append([f"  s_add_u32 m0, s21, {ldsbase + 8192*j:#x}", "  s_nop 0",
                      f"  buffer_load_dwordx4 v{vv[j]}, {srd}, {soff} offen lds"])
        return o
    XSL = [KBASE + 2 * SLOT, XTRA]; WSL = [VBASE + 2 * SLOT, VBASE + 3 * SLOT]
    def tile_soff(kind, tile):
        return tile * 128 if kind == "V" else tile * 64 * 8192
    def issue_static(kind, tile, ldsbase, out=None):
        out = L if out is None else out
        out.append(f"  s_mov_b32 s46, {tile_soff(kind, tile):#x}")
        for g in dma(kind, ldsbase, "s46"):
            out.extend(g); vm_issue((kind, tile))
    def issue_qstage(u, out=None):
        out = L if out is None else out
        for j in range(4):
            out.append(f"  s_add_u32 m0, s33, {XSL[u%2] + 1024*j:#x}")
            out.append(f"  s_mov_b32 s46, {u*128 + 9216*j:#x}")
            out.append(f"  buffer_load_dwordx4 v{pDX[j%2]}, s[16:19], s46 offen lds")
            vm_issue(("Q", u))
        issue_static("W", u, WSL[u % 2], out)
        vm_ops[-1] = vm_ops[-2] = ("Q", u)
    issue_qstage(0); issue_qstage(1)
    vr_ = vt; vh = vt2
    e(f"v_bfe_u32 v{vr_}, v{vl}, 2, 2")
    e(f"v_lshrrev_b32 v{vh}, 5, v{vl}")
    e(f"v_bfe_u32 v{vt3}, v{vl}, 4, 1")
    e(f"v_lshlrev_b32 v{vt3}, 5, v{vt3}")
    e(f"v_and_b32 v{va_}, 3, v{vl}")
    e(f"v_lshl_add_u32 v{vt3}, v{va_}, 3, v{vt3}")
    e(f"v_lshl_add_u32 v{va_}, v{vh}, 3, v{vr_}")
    e(f"v_lshl_add_u32 v{va_}, v{va_}, 8, v{vt3}")
    for T in range(4):
        e(f"v_xor_b32 v{vt3}, {T}, v{vr_}")
        e(f"v_lshl_add_u32 v{vd}, v{vt3}, 6, v{va_}")
        e(f"v_add_u32 v{pWA[T]}, {WSL[0]:#x}, v{vd}")
    e(f"v_and_b32 v{va_}, 31, v{vl}")
    e(f"v_lshrrev_b32 v{vb_}, 1, v{va_}")
    e(f"v_xor_b32 v{vb_}, v{vb_}, v{vh}")
    e(f"v_and_b32 v{vb_}, 7, v{vb_}")
    e(f"v_lshlrev_b32 v{va_}, 7, v{va_}")
    for c in range(4):
        e(f"v_xor_b32 v{vt3}, {2*c}, v{vb_}")
        e(f"v_lshl_add_u32 v{vd}, v{vt3}, 4, v{va_}")
        e(f"v_add_u32 v{vVA[c]}, {VBASE:#x}, v{vd}")
        e(f"v_add_u32 v{vd}, s33, v{vd}")
        e(f"v_add_u32 v{pXA[c]}, {XSL[0]:#x}, v{vd}")
        e(f"v_add_u32 v{pXA[4+c]}, {XSL[1]:#x}, v{vd}")
    lq = LdsQ()
    fr = [(u, tq, T) for u in range(9) for tq in range(4) for T in range(4)]
    def w_reads(n):
        u, tq, T = fr[n]
        off = (u % 2) * SLOT + tq * 16 * 256
        r = AR + (n % 4) * 4
        return [f"  ds_read_b64_tr_b16 {vr(r,2)}, v{pWA[T]} offset:{off}",
                f"  ds_read_b64_tr_b16 {vr(r+2,2)}, v{pWA[T]} offset:{off+1024}"]
    def x_read(u, tq):
        return f"  ds_read_b128 {vr(BR+((u%2)*4+tq)*4,4)}, v{pXA[(u%2)*4+tq]}"
    seq = {}; xseq = {}
    LAW = 3
    e(f"s_waitcnt vmcnt({vm_wait_for(('Q',0))})")
    e("s_barrier")
    if DBG:
        e("s_memtime s[50:51]"); e("s_waitcnt lgkmcnt(0)"); e("v_writelane_b32 v30, s50, 1")
    L.append(x_read(0, 0)); xseq[(0, 0)] = lq.issue()
    for n in range(LAW):
        L.extend(w_reads(n)); seq[n] = lq.issue(2)
    for tq in range(1, 4):
        L.append(x_read(0, tq)); xseq[(0, tq)] = lq.issue()
    started = set()
    pend = []
    for n, (u, tq, T) in enumerate(fr):
        nn = n + LAW
        if nn < len(fr) and fr[nn][0] != fr[nn - 1][0]:
            un = fr[nn][0]
            e(f"s_waitcnt vmcnt({vm_wait_for(('Q',un))}) lgkmcnt(0)")
            lq.drain()
            e("s_barrier")
            for t2 in range(4):
                L.append(x_read(un, t2)); xseq[(un, t2)] = lq.issue()
            if un + 1 < 9:
                issue_qstage(un + 1, pend)
            if un == 5:
                issue_static("K", 0, KBASE, pend); issue_static("V", 0, VBASE, pend)
            if un == 7:
                issue_static("K", 1, KBASE + SLOT, pend); issue_static("V", 1, VBASE + SLOT, pend)
        lq.need(L, max(seq[n], xseq[(u, tq)]))
        a = O + 16 * T
        c = vr(a, 16) if T in started else "0"
        started.add(T)
        e(f"v_mfma_f32_32x32x16_bf16 {vr(a,16)}, {vr(AR+(n%4)*4,4)}, {vr(BR+((u%2)*4+tq)*4,4)}, {c}")
        if nn < len(fr):
            L.extend(w_reads(nn)); seq[nn] = lq.issue(2)
        L.extend(pend[:4]); pend = pend[4:]
    L.extend(pend)
    e(f"s_waitcnt vmcnt({vm_wait_for(('K',0))}) lgkmcnt(0)")
    e("s_barrier")
    if DBG:
        e("s_memtime s[50:51]"); e("s_waitcnt lgkmcnt(0)"); e("v_writelane_b32 v30, s50, 2")
    for kind, tile in [("K", 2), ("V", 2), ("K", 3)]:
        issue_static(kind, tile, (KBASE if kind == "K" else VBASE) + tile * SLOT)
    e(f"v_and_b32 v{vt}, 31, v{vl}")
    e(f"v_lshlrev_b32 v{vt}, 8, v{vt}")
    e(f"v_lshrrev_b32 v{vt2}, 5, v{vl}")
    e(f"v_xor_b32 v{vt2}, v{vt2}, v{vl}")
    e(f"v_and_b32 v{vt2}, 15, v{vt2}")
    for c in range(8):
        e(f"v_xor_b32 v{vt3}, {2*c}, v{vt2}")
        e(f"v_lshl_add_u32 v{vKA[c]}, v{vt3}, 4, v{vt}")
    def k_read(slot, n):
        sub, c = n // 8, n % 8
        return f"  ds_read_b128 {vr(FR+(n%R)*4,4)}, v{vKA[c]} offset:{KBASE + slot*SLOT + sub*8192}"
    lq = LdsQ()
    seq = {}
    for n in range(R):
        L.append(k_read(0, n)); seq[n] = lq.issue()
    e(f"v_and_b32 v{vmk}, 31, v{vl}")
    e("s_and_b32 s46, s22, 32")
    e(f"v_add_u32 v{vmk}, s46, v{vmk}")
    e(f"v_lshrrev_b32 v{vt2}, 5, v{vl}")
    e(f"v_lshlrev_b32 v{vt2}, 2, v{vt2}")
    e(f"v_sub_u32 v{vmk}, v{vmk}, v{vt2}")
    e(f"v_mov_b32 v{vneg}, 0xff800000")
    e(f"s_mov_b32 s46, {f2u(128 ** -0.5 * 1.4426950408889634):#x}")
    for T in range(4):
        for i in range(16):
            e(f"v_mul_f32 v{O+16*T+i}, s46, v{O+16*T+i}")
        for ee in range(2):
            d = Q + (2 * T + ee) * 4; a = O + 16 * T + 4 * ee
            e(f"v_cvt_pk_bf16_f32 v{d}, v{a}, v{a+1}")
            e(f"v_cvt_pk_bf16_f32 v{d+1}, v{a+2}, v{a+3}")
            e(f"v_cvt_pk_bf16_f32 v{d+2}, v{a+8}, v{a+9}")
            e(f"v_cvt_pk_bf16_f32 v{d+3}, v{a+10}, v{a+11}")
    e(f"v_mov_b32 v{vsum}, 0")

    def qk_mfma(sb, n, first=False):
        sub, c = n // 8, n % 8
        a = S[sb] + 16 * sub
        cc = vr(a, 16) if c else ("0" if first else vr(NM, 16))
        return f"  v_mfma_f32_32x32x16_bf16 {vr(a,16)}, {vr(FR+(n%R)*4,4)}, {vr(Q+4*c,4)}, {cc}"
    def v_read(slot, m):
        ks, T = m // 4, m % 4
        return f"  ds_read_b128 {vr(FR+(m%R)*4,4)}, v{vVA[ks]} offset:{slot*SLOT + T*4096}"
    def preg(sb, ks):
        return S[sb] + 16 * (ks >> 1) + 4 * (ks & 1)
    def pv_mfma(sb, m):
        ks, T = m // 4, m % 4
        a = O + 16 * T
        return f"  v_mfma_f32_32x32x16_bf16 {vr(a,16)}, {vr(FR+(m%R)*4,4)}, {vr(preg(sb,ks),4)}, {vr(a,16)}"
    def exp_ops(sb, ks):
        b = preg(sb, ks)
        src = [b, b + 2, b + 8, b + 10]
        ops = []
        pend = []
        for j in range(4):
            x, y = src[j], src[j] + 1
            ops.append((2, f"  v_exp_f32 v{x}, v{x}"))
            ops.append((2, f"  v_exp_f32 v{y}, v{y}"))
            ops.extend(pend)
            pend = [(1, f"  v_add_f32 v{vsum}, v{vsum}, v{x}"),
                    (1, f"  v_add_f32 v{vsum}, v{vsum}, v{y}"),
                    (1, f"  v_cvt_pk_bf16_f32 v{b+j}, v{x}, v{y}")]
        return ops, pend
    def exp_all(sb, kss):
        ops = []; pend = []
        marks = {}
        for ks in kss:
            o, p = exp_ops(sb, ks)
            ops.extend(o[:2]); ops.extend(pend); ops.extend(o[2:])
            pend = p
        ops.append((1, "  s_nop 0"))
        ops.extend(pend)
        return ops
    def max_ops(sb):
        ops = []
        for sub, acc in ((0, va_), (1, vb_)):
            b = S[sb] + 16 * sub
            ops.append((1, f"  v_max3_f32 v{acc}, v{b}, v{b+1}, v{b+2}"))
            for j in range(3, 15, 2):
                ops.append((1, f"  v_max3_f32 v{acc}, v{acc}, v{b+j}, v{b+j+1}"))
        ops.append((1, f"  v_max3_f32 v{va_}, v{va_}, v{S[sb]+15}, v{S[sb]+31}"))
        ops.append((1, f"  v_max_f32 v{va_}, v{va_}, v{vb_}"))
        ops.append((1, f"  v_cmp_lt_f32 vcc, s{STH}, v{va_}"))
        return ops
    def xhalf_max():
        return [f"  v_mov_b32 v{vb_}, v{va_}", "  s_nop 1", f"  v_permlane32_swap_b32 v{va_}, v{vb_}", "  s_nop 1",
                f"  v_max_f32 v{va_}, v{va_}, v{vb_}"]
    def mask_block(sb):
        o = ["  s_nop 7", "  s_nop 3"]
        items = []
        for sub in range(2):
            for i in range(16):
                g, r = i >> 2, i & 3
                items.append((S[sb] + 16 * sub + i, 32 * sub + 8 * g + r))
        pairs = [34, 36, 38]
        n = len(items)
        for i in range(n + 2):
            if i < n:
                o.append(f"  v_cmp_gt_i32 s[{pairs[i%3]}:{pairs[i%3]+1}], {items[i][1]}, v{vmk}")
            if i >= 2:
                reg = items[i - 2][0]; p = pairs[(i - 2) % 3]
                if i >= n: o.append("  s_nop 0")
                o.append(f"  v_cndmask_b32 v{reg}, v{reg}, v{vneg}, s[{p}:{p+1}]")
        return o
    def rare_block(sn):
        o = [f"  s_cbranch_vccz 2f", "  s_nop 7", "  s_nop 3"] + xhalf_max() + [
             f"  v_max_f32 v{va_}, 0, v{va_}", f"  v_sub_f32 v{vd}, 0, v{va_}", f"  v_exp_f32 v{vd}, v{vd}"]
        for i in range(32):
            o.append(f"  v_sub_f32 v{S[sn]+i}, v{S[sn]+i}, v{va_}")
        for i in range(16):
            o.append(f"  v_sub_f32 v{NM+i}, v{NM+i}, v{va_}")
        for i in range(64):
            o.append(f"  v_mul_f32 v{O+i}, v{O+i}, v{vd}")
        o.append(f"  v_mul_f32 v{vsum}, v{vsum}, v{vd}")
        o.append("  s_nop 1")
        o.append("2:")
        return o
    def barrier_block(lq, out):
        if DBG:
            out.append("  s_memtime s[50:51]")
        out.append("  s_waitcnt vmcnt(8) lgkmcnt(0)")
        out.append("  s_barrier")
        if DBG:
            out.append("  s_memtime s[52:53]")
            out.append("  s_add_u32 m0, s25, 4")
            out.append("  s_nop 0")
            out.append("  v_writelane_b32 v30, s50, m0")
            out.append("  s_waitcnt lgkmcnt(0)")
            out.append("  v_writelane_b32 v31, s52, m0")
        lq.drain()
    def dma_after(sslot):
        g = []
        kk = dma("K", KBASE + sslot * SLOT, "s26")
        vv = dma("V", VBASE + ((sslot + 3) % 4) * SLOT, "s27")
        for x in kk + vv:
            g.append([x[0], x[2]])
        g[3] += ["  s_add_u32 s26, s26, 0x80000", "  s_add_u32 s27, s27, 128"]
        return g

    for n in range(16):
        lq.need(L, seq[n])
        L.append(qk_mfma(0, n, first=True))
        if n + R < 16:
            L.append(k_read(0, n + R)); seq[n + R] = lq.issue()
        for i in range(4):
            e(f"v_mov_b32 v{O+4*n+i}, 0")
    e("s_cmp_eq_u32 s23, 0")
    e("s_cbranch_scc0 6f")
    L.extend(mask_block(0))
    k.lab("6")
    e("s_nop 7"); e("s_nop 3")
    for c_, ins in max_ops(0):
        L.append(ins)
    L.extend(xhalf_max())
    for i in range(32):
        e(f"v_sub_f32 v{S[0]+i}, v{S[0]+i}, v{va_}")
    for i in range(16):
        e(f"v_sub_f32 v{NM+i}, 0, v{va_}")
    e("s_mov_b32 s25, 0")
    e(f"s_mov_b32 s26, {4*64*8192:#x}")
    e(f"s_mov_b32 s27, {3*128:#x}")
    barrier_block(lq, L)
    for n in range(R):
        L.append(k_read(1, n))
    lfin = [f"{name}_fin{p}" for p in range(4)]
    lbody = [f"{name}_body{p}" for p in range(4)]
    e("s_cmp_eq_u32 s23, 0")
    e(f"s_cbranch_scc1 {lfin[0]}")

    for p in range(4):
        k.lab(lbody[p])
        sb = p % 2; sn = (p + 1) % 2
        kslot = (p + 1) % 4; vslot = p
        lq = LdsQ()
        fseq = {}
        for n in range(R): fseq[n] = lq.issue()
        valu = exp_all(sb, range(4))
        mops = max_ops(sn)
        vi = 0; spent = 0.0
        post = dma_after(p)
        for g in range(32):
            lq.need(L, fseq[min(g + (3 - g % 4), 31) if g >= 4 else min(g + (1 - g % 2), 31)])
            if g in DGAPS:
                L.append(post[0][0])
            L.append(qk_mfma(sn, g) if g < 16 else pv_mfma(sb, g - 16))
            n = g + R
            if n < 16:
                L.append(k_read(kslot, n)); fseq[n] = lq.issue()
            elif n < 32:
                L.append(v_read(vslot, n - 16)); fseq[n] = lq.issue()
            elif g > GBAR:
                L.append(k_read((p + 2) % 4, n - 32)); lq.issue()
            if g == 17:
                e(f"s_add_u32 s25, s25, 1")
                e("s_cmp_eq_u32 s25, s23")
                e("s_cbranch_scc0 6f")
                L.extend(mask_block(sn))
                k.lab("6")
                valu += mops
            if g == GBAR:
                barrier_block(lq, L)
                for n in range(GBAR + R - 31):
                    L.append(k_read((p + 2) % 4, n)); lq.issue()
            if g in DGAPS:
                L.extend(post.pop(0)[1:])
            target = RATE * (g + 1)
            while vi < len(valu) and (spent < target or g == 31):
                c_, ins = valu[vi]; vi += 1
                L.append(ins); spent += c_
        assert vi == len(valu) and not post
        L.extend(rare_block(sn))
        e("s_cmp_eq_u32 s25, s23")
        e(f"s_cbranch_scc1 {lfin[(p+1)%4]}")
        if p == 3:
            e(f"s_branch {lbody[0]}")
    lload = name + "_loader"
    for p in range(4):
        k.lab(lfin[p])
        sb = p % 2; vslot = p
        e("s_waitcnt lgkmcnt(0)")
        lq = LdsQ()
        vseq = {}
        for m in range(R):
            L.append(v_read(vslot, m)); vseq[m] = lq.issue()
        for c_, ins in exp_all(sb, [0]): L.append(ins)
        e("s_nop 1")
        post = dma_after(p)
        for m in range(16):
            lq.need(L, vseq[m])
            if m % 4 == 1: L.append(post[0][0])
            L.append(pv_mfma(sb, m))
            if m % 4 == 1: L.extend(post.pop(0)[1:])
            if m + R < 16:
                L.append(v_read(vslot, m + R)); vseq[m + R] = lq.issue()
            ks = m // 4 + 1
            if ks < 4:
                if m % 4 == 0:
                    rest = exp_all(sb, [ks])
                n3 = (len(rest) + 2) // 3
                for c_, ins in rest[(m % 4) * n3: (m % 4 + 1) * n3]:
                    L.append(ins)
                if m % 4 == 3: e("s_nop 1")
        if p < 3: e(f"s_branch {lload}")
    k.lab(lload)
    lepi = name + "_epi"
    e("s_add_u32 s25, s25, 1")
    e("s_cmp_ge_u32 s25, s24")
    e(f"s_cbranch_scc1 {lepi}")
    lq = LdsQ()
    barrier_block(lq, L)
    e("s_and_b32 s47, s25, 3")
    e("s_lshl_b32 s47, s47, 14")
    e("s_add_u32 s47, s47, s21")
    for j in range(2):
        e(f"s_add_u32 m0, s47, {KBASE + 8192*j:#x}")
        e("s_nop 0")
        e(f"buffer_load_dwordx4 v{vDK[j]}, s[4:7], s26 offen lds")
    e("s_add_u32 s46, s25, 3")
    e("s_and_b32 s47, s46, 3")
    e("s_lshl_b32 s47, s47, 14")
    e("s_add_u32 s47, s47, s21")
    for j in range(2):
        e(f"s_add_u32 m0, s47, {VBASE + 8192*j:#x}")
        e("s_nop 0")
        e(f"buffer_load_dwordx4 v{vDV[j]}, s[8:11], s27 offen lds")
    e("s_add_u32 s26, s26, 0x80000")
    e("s_add_u32 s27, s27, 128")
    e(f"s_branch {lload}")
    k.lab(lepi)
    e("s_waitcnt vmcnt(0)")
    e("s_barrier")
    e("s_lshl_b32 s46, s22, 13")
    e("s_add_u32 s46, s46, s44")
    e(f"s_sub_u32 s47, {SZ_KV}, s46")
    mk_srd(k, 16, 40, off_sgpr=46, off_imm=WS['ctx'], size_sgpr=47)
    e(f"v_mov_b32 v{vb_}, v{vsum}")
    e("s_lshl_b32 s33, s20, 13")
    e("s_nop 0")
    e(f"v_permlane32_swap_b32 v{vsum}, v{vb_}")
    e("s_nop 1")
    e(f"v_add_f32 v{vsum}, v{vsum}, v{vb_}")
    e(f"v_rcp_f32 v{vsum}, v{vsum}")
    for c in range(8):
        e(f"v_add_u32 v{vKA[c]}, s33, v{vKA[c]}")
    e(f"v_lshlrev_b32 v{vt}, 4, v{vl}")
    e(f"v_add_u32 v{vt}, s33, v{vt}")
    e(f"v_lshrrev_b32 v{vt2}, 4, v{vl}")
    for T in range(4):
        for ee in range(2):
            a = O + 16 * T + 4 * ee
            for i in (0, 1, 2, 3, 8, 9, 10, 11):
                e(f"v_mul_f32 v{a+i}, v{a+i}, v{vsum}")
            e(f"v_cvt_pk_bf16_f32 v{a}, v{a}, v{a+1}")
            e(f"v_cvt_pk_bf16_f32 v{a+1}, v{a+2}, v{a+3}")
            e(f"v_cvt_pk_bf16_f32 v{a+2}, v{a+8}, v{a+9}")
            e(f"v_cvt_pk_bf16_f32 v{a+3}, v{a+10}, v{a+11}")
            e(f"ds_write_b128 v{vKA[2*T+ee]}, {vr(a,4)}")
    for jj in range(4):
        e(f"v_add_u32 v{vt3}, {4*jj}, v{vt2}")
        e(f"v_xor_b32 v{vd}, v{vt3}, v{vl}")
        e(f"v_and_b32 v{vd}, 15, v{vd}")
        e(f"v_lshlrev_b32 v{vd}, 4, v{vd}")
        e(f"v_lshl_add_u32 v{vVA[jj]}, v{vt3}, 13, v{vd}")
    e("s_waitcnt lgkmcnt(0)")
    for j in range(8):
        e(f"ds_read_b128 {vr(S[0]+4*j,4)}, v{vt} offset:{1024*j}")
    e(f"s_mov_b32 s46, {16*8192:#x}")
    for j in range(8):
        e(f"s_waitcnt lgkmcnt({7-j})")
        so = "0" if j < 4 else "s46"
        e(f"buffer_store_dwordx4 {vr(S[0]+4*j,4)}, v{vVA[j%4]}, s[16:19], {so} offen")
    if DBG:
        e("s_waitcnt vmcnt(0)")
        e("s_memtime s[50:51]")
        e("s_memrealtime s[52:53]")
        e("s_waitcnt lgkmcnt(0)")
        e("v_writelane_b32 v30, s50, 3")
        e("v_writelane_b32 v31, s52, 1")
        e("s_lshl_b32 s46, s2, 3")
        e("s_add_u32 s46, s46, s20")
        e("s_lshl_b32 s46, s46, 9")
        mk_srd(k, 16, 40, off_sgpr=46, off_imm=DBG_OFF, size=512)
        e(f"v_lshlrev_b32 v{vt}, 2, v{vl}")
        e(f"buffer_store_dword v30, v{vt}, s[16:19], 0 offen")
        e(f"buffer_store_dword v31, v{vt}, s[16:19], 0 offen offset:256")
    k.lab(lend)
    e("s_endpgm")
    return k, LDS_TOTAL
```

```python
from gen_common import *
import os
GDBG = os.environ.get("GEMM_DBG", "")
DBG_OFF = 200 * 1024 * 1024

def compress_loop(k, epochs, period, scount):
    n = len(epochs)
    best = (0, 0)
    for st in range(n):
        reps = 1
        while st + (reps + 1) * period <= n and \
                epochs[st + reps * period: st + (reps + 1) * period] == epochs[st: st + period]:
            reps += 1
        if reps > best[0]:
            best = (reps, st)
    reps, st = best
    if reps < 2:
        for ep in epochs:
            k.L.extend(ep)
        return
    for ep in epochs[:st]:
        k.L.extend(ep)
    lab = k.newlab("loop")
    k.e(f"s_mov_b32 s{scount}, {reps}")
    k.lab(lab)
    for ep in epochs[st: st + period]:
        k.L.extend(ep)
    k.e(f"s_sub_u32 s{scount}, s{scount}, 1")
    k.e(f"s_cmp_lg_u32 s{scount}, 0")
    k.e(f"s_cbranch_scc1 {lab}")
    for ep in epochs[st + reps * period:]:
        k.L.extend(ep)


def gen_gemm(name, BM, BN, WM, WN, WK, NS, nst, nwg, mapfn, xperm, epi, ldx, ldw, pre_hook=None, LA=8, loop=True, epi_alt=None):
    assert WM * WN * WK == 8
    k = Kern(name)
    k.uses(52)
    TM = BM // WM // 16
    TN = BN // WN // 16
    XB = BM * 128
    WB = 64 * BN * 2
    SB = XB + WB
    nA = BM // 8; nB = BN // 8
    T = nA + nB
    nmin = T // 8; nextra = T % 8
    lds = NS * SB
    k.e(f"s_cmp_ge_u32 s2, {nwg}")
    lend = name + "_end"
    k.e(f"s_cbranch_scc1 {lend}")
    va = VAlloc(k, 1)
    vl = va.get(); vt = va.get(); vt2 = va.get(); vt3 = va.get()
    dbg = (GDBG == name)
    vst = va.get() if dbg else None
    def stamp(out, idx):
        if not dbg: return
        out.append("  s_memtime s[50:51]")
        out.append("  s_waitcnt lgkmcnt(0)")
        if idx is None:
            out.append("  s_add_u32 s52, s52, 1")
            out.append("  s_mov_b32 m0, s52")
            out.append("  s_nop 0")
            out.append(f"  v_writelane_b32 v{vst}, s50, m0")
        else:
            out.append(f"  v_writelane_b32 v{vst}, s50, {idx}")
    if dbg:
        k.uses(56)
        k.e(f"v_mov_b32 v{vst}, 0")
        k.e("s_mov_b32 s52, 3")
        k.e("s_memrealtime s[54:55]")
        k.e("s_waitcnt lgkmcnt(0)")
        k.e(f"v_writelane_b32 v{vst}, s54, 62")
        stamp(k.L, 0)
    k.e(f"v_and_b32 v{vl}, 63, v0")
    k.e(f"v_lshrrev_b32 v{vt}, 6, v0")
    k.e("s_nop 0")
    k.e(f"v_readfirstlane_b32 s20, v{vt}")
    mapfn(k)
    k.e("s_lshl_b32 s21, s20, 10")
    k.e(f"s_and_b32 s22, s20, {WN-1}")
    k.e(f"s_lshr_b32 s23, s20, {WN.bit_length()-1}")
    k.e(f"s_and_b32 s24, s23, {WM-1}")
    k.e(f"s_lshr_b32 s25, s23, {WM.bit_length()-1}")
    SWN, SWM, SKG = 22, 24, 25
    assert nA % 8 == 0
    jA = nA // 8
    pieces = []
    jB = (nB + 7) // 8
    for j in range(jA): pieces.append(("A", j))
    for j in range(jB): pieces.append(("B", j))
    extra = None
    if nextra:
        extra = pieces.pop()
    assert len(pieces) == nmin
    voff = {}
    k.e(f"s_and_b32 s28, s20, 1")
    k.e(f"s_lshl_b32 s28, s28, 2")
    k.e(f"v_lshrrev_b32 v{vt}, 4, v{vl}")
    k.e(f"v_add_u32 v{vt}, s28, v{vt}")
    k.e(f"v_xor_b32 v{vt}, v{vt}, v{vl}")
    k.e(f"v_and_b32 v{vt}, 7, v{vt}")
    k.e(f"v_lshlrev_b32 v{vt}, 4, v{vt}")
    k.e(f"v_lshrrev_b32 v{vt2}, 3, v{vl}")
    k.e(f"s_lshl_b32 s28, s20, 3")
    k.e(f"v_add_u32 v{vt2}, s28, v{vt2}")
    k.e(f"s_mov_b32 s28, {ldx}")
    k.e(f"v_mul_lo_u32 v{vt2}, v{vt2}, s28")
    for j in range(jA):
        r = va.get(); voff[("A", j)] = r
        if j == 0:
            k.e(f"v_add_u32 v{r}, v{vt2}, v{vt}")
        else:
            k.e(f"v_add_u32 v{r}, {64*j*ldx:#x}, v{voff[('A',0)]}")
    k.e(f"s_mov_b32 s29, {ldw}")
    if BN == 256:
        k.e(f"v_lshrrev_b32 v{vt2}, 5, v{vl}")
        k.e(f"s_lshl_b32 s28, s20, 1")
        k.e(f"v_add_u32 v{vt2}, s28, v{vt2}")
        k.e(f"v_and_b32 v{vt}, 3, v{vt2}")
        k.e(f"v_lshrrev_b32 v{vt3}, 3, v{vt2}")
        k.e(f"v_lshl_or_b32 v{vt}, v{vt3}, 2, v{vt}")
        k.e(f"v_lshlrev_b32 v{vt}, 1, v{vt}")
        k.e(f"v_xor_b32 v{vt}, v{vt}, v{vl}")
        k.e(f"v_and_b32 v{vt}, 31, v{vt}")
        k.e(f"v_lshlrev_b32 v{vt}, 4, v{vt}")
        k.e(f"v_mul_lo_u32 v{vt2}, v{vt2}, s29")
        for j in range(jB):
            r = va.get(); voff[("B", j)] = r
            if j == 0:
                k.e(f"v_add_u32 v{r}, v{vt2}, v{vt}")
            else:
                k.e(f"v_add_u32 v{r}, {16*j*ldw:#x}, v{voff[('B',0)]}")
    else:
        CPR = BN // 8
        assert BN == 144
        for j in range(jB):
            r = va.get(); voff[("B", j)] = r
            k.e(f"s_lshl_b32 s28, s20, 6")
            k.e(f"s_add_u32 s28, s28, {512*j}")
            k.e(f"v_add_u32 v{vt}, s28, v{vl}")
            k.e(f"v_mul_u32_u24 v{vt2}, 3641, v{vt}")
            k.e(f"v_lshrrev_b32 v{vt2}, 16, v{vt2}")
            k.e(f"v_mul_u32_u24 v{vt3}, 18, v{vt2}")
            k.e(f"v_sub_u32 v{vt}, v{vt}, v{vt3}")
            k.e(f"v_lshlrev_b32 v{vt}, 4, v{vt}")
            if xperm == "nat":
                k.e(f"v_lshrrev_b32 v{vt3}, 1, v{vt2}")
                k.e(f"v_and_b32 v{vt3}, 4, v{vt3}")
                k.e(f"v_xor_b32 v{vt2}, v{vt2}, v{vt3}")
            k.e(f"v_mul_lo_u32 v{vt2}, v{vt2}, s29")
            k.e(f"v_add_u32 v{r}, v{vt2}, v{vt}")
    SOA, SOB = 30, 31
    k.e(f"s_mov_b32 s{SOA}, 0")
    k.e(f"s_mov_b32 s{SOB}, 0")

    def dma_ops(slot):
        ops = []
        allp = ([extra] if extra else []) + pieces
        for (kind, j) in allp:
            base = slot * SB + (0 if kind == "A" else XB) + 8192 * j
            g = [f"  s_add_u32 m0, s21, {base:#x}"]
            srd = "s[4:7]" if kind == "A" else "s[8:11]"
            so = SOA if kind == "A" else SOB
            ld = f"  buffer_load_dwordx4 v{voff[(kind,j)]}, {srd}, s{so} offen lds"
            if (kind, j) == extra:
                g = [f"  s_cmp_lt_u32 s20, {nextra}", "  s_cbranch_scc0 1f", g[0], "  s_nop 0", ld, "1:"]
            else:
                g = [g[0], "  s_nop 0", ld]
            ops.append(g)
        ops.append([f"  s_add_u32 s{SOA}, s{SOA}, 128", f"  s_add_u32 s{SOB}, s{SOB}, {64*ldw:#x}"])
        return ops
    q = va.get()
    k.e(f"v_lshrrev_b32 v{q}, 4, v{vl}")
    nks = 2 // WK
    vX = [va.get() for _ in range(nks)]
    k.e(f"v_and_b32 v{vt}, 15, v{vl}")
    k.e(f"v_lshrrev_b32 v{vt2}, 1, v{vt}")
    k.e(f"v_xor_b32 v{vt2}, v{vt2}, v{q}")
    if WK == 2:
        k.e(f"s_lshl_b32 s28, s{SKG}, 2")
        k.e(f"v_xor_b32 v{vt2}, s28, v{vt2}")
    k.e(f"v_lshlrev_b32 v{vt2}, 4, v{vt2}")
    k.e(f"s_mul_i32 s28, s{SWM}, {TM*16*128}")
    k.e(f"v_lshl_add_u32 v{vt2}, v{vt}, 7, v{vt2}")
    k.e(f"v_add_u32 v{vX[0]}, s28, v{vt2}")
    if nks == 2:
        k.e(f"v_xor_b32 v{vX[1]}, 64, v{vX[0]}")
    k.e(f"v_bfe_u32 v{vt}, v{vl}, 2, 2")
    k.e(f"v_and_b32 v{vt2}, 3, v{vl}")
    k.e(f"v_lshlrev_b32 v{vt2}, 3, v{vt2}")
    Wrd = {}
    if BN == 256:
        assert WK == 1
        vW = [va.get() for _ in range(TN)]
        k.e(f"v_lshl_add_u32 v{vt3}, v{q}, 3, v{vt}")
        k.e(f"v_lshl_add_u32 v{vt2}, v{vt3}, 9, v{vt2}")
        k.e(f"v_and_b32 v{vt3}, 1, v{q}")
        k.e(f"v_lshl_or_b32 v{vt3}, v{vt3}, 2, v{vt}")
        k.e(f"s_lshl_b32 s28, s{SWN}, 2")
        k.e(f"v_xor_b32 v{vt3}, s28, v{vt3}")
        for ti in range(TN):
            k.e(f"v_xor_b32 v{vt}, {ti}, v{vt3}")
            k.e(f"v_lshl_add_u32 v{vt}, v{vt}, 5, v{vt2}")
            k.e(f"v_add_u32 v{vW[ti]}, {XB:#x}, v{vt}")
        for ks in range(2):
            for ti in range(TN):
                for s in range(2):
                    Wrd[(ks, ti, s)] = (vW[ti], ks * 32 * 512 + s * 4 * 512)
    else:
        assert WN == 1
        RS = BN * 2
        if xperm == "nat":
            vW = [va.get() for _ in range(2)]
            k.e(f"v_and_b32 v{vt3}, 1, v{q}")
            k.e(f"v_lshl_add_u32 v{vt3}, v{vt3}, 2, v{vt}")
            k.e(f"v_lshl_add_u32 v{vt3}, v{q}, 3, v{vt3}")
            k.e(f"v_mul_u32_u24 v{vt}, {RS}, v{vt3}")
            k.e(f"v_add_u32 v{vW[0]}, v{vt}, v{vt2}")
            k.e(f"v_xor_b32 v{vt3}, 4, v{vt3}")
            k.e(f"v_mul_u32_u24 v{vt}, {RS}, v{vt3}")
            k.e(f"v_add_u32 v{vW[1]}, v{vt}, v{vt2}")
            sel = lambda s: (s, 0)
        else:
            vW = [va.get()]
            k.e(f"v_lshl_add_u32 v{vt3}, v{q}, 2, v{vt}")
            k.e(f"v_mul_u32_u24 v{vt}, {RS}, v{vt3}")
            k.e(f"v_add_u32 v{vW[0]}, v{vt}, v{vt2}")
            sel = lambda s: (0, s * 16 * RS)
        if WK == 2:
            k.e(f"s_mul_i32 s28, s{SKG}, {32*RS}")
            k.e(f"s_add_u32 s28, s28, {XB:#x}")
        else:
            k.e(f"s_mov_b32 s28, {XB:#x}")
        for r in vW:
            k.e(f"v_add_u32 v{r}, s28, v{r}")
        for ks in range(nks):
            for t in range(TN):
                for s in range(2):
                    i, imm = sel(s)
                    Wrd[(ks, t, s)] = (vW[i], imm + ks * 32 * RS + 32 * t)
    addr_regs = vX + vW
    hook_stores = 0
    if pre_hook:
        pre_hook(k, va, "load")
    for st in range(min(NS, nst)):
        for g in dma_ops(st):
            k.L.extend(g)
    if pre_hook:
        hook_stores = pre_hook(k, va, "compute", nmin * min(NS, nst) + (1 if False else 0))
    acc = va.get(TM * TN * 4, 4)
    def accr(mi, ti): return acc + (mi * TN + ti) * 4
    outerW = TN > TM
    NO, NI = (TN, TM) if outerW else (TM, TN)
    RO = (LA + NI - 1) // NI + 1
    while (NO * nks * NS) % RO: RO += 1
    oring = va.get(RO * 4, 4)
    NIS = 2 if (nks * NS) % 2 == 0 else 3
    iring = va.get(NIS * NI * 4, 4)
    LB = max(NI + LA - 4, 2)
    slots = []
    for st in range(nst):
        for ks in range(nks):
            for o in range(NO):
                for i in range(NI):
                    slots.append((st, ks, o, i))
    per_stage = nks * NO * NI
    def reads_for(kind, ks, idx, reg):
        isW = (kind == "o") == outerW
        if isW:
            out = []
            for s in range(2):
                v, imm = Wrd[(ks, idx, s)]
                out.append(f"  ds_read_b64_tr_b16 {vr(reg+2*s,2)}, v{v} offset:{imm}")
            return out
        return [f"  ds_read_b128 {vr(reg,4)}, v{vX[ks]} offset:{idx*2048}"]
    frags = []
    ocnt = 0; icnt = 0
    fmap = {}
    for st in range(nst):
        for ks in range(nks):
            base = (st * nks + ks) * NO * NI
            for i in range(NI):
                f = dict(kind="i", st=st, ks=ks, idx=i, first=base + i, last=base + (NO - 1) * NI + i,
                         reg=iring + ((icnt % NIS) * NI + i) * 4)
                frags.append(f); fmap[("i", st, ks, i)] = f
            icnt += 1
            for o in range(NO):
                f = dict(kind="o", st=st, ks=ks, idx=o, first=base + o * NI, last=base + o * NI + NI - 1,
                         reg=oring + (ocnt % RO) * 4)
                ocnt += 1
                frags.append(f); fmap[("o", st, ks, o)] = f
    lastuse = {}
    for f in sorted(frags, key=lambda f: f["first"]):
        p = f["first"] - LA
        if f["kind"] == "i":
            p = f["first"] - NO * NI + 1 + f["idx"] * max(1, (NO * NI - LA) // NI)
            p = min(p, f["first"] - LA)
        p = max(p, lastuse.get(f["reg"], -1) + 1)
        bar = f["st"] * per_stage - LB if f["st"] > 0 else 0
        p = max(p, bar, 0)
        f["pos"] = p
        lastuse[f["reg"]] = f["last"]
    bypos = {}
    for f in frags:
        bypos.setdefault(f["pos"], []).append(f)
    for p in bypos:
        bypos[p].sort(key=lambda f: f["first"])
    def body(trout, epi):
        epochs = []
        cur = []
        inflight = min(NS, nst) - 1
        cur.append(f"  s_waitcnt vmcnt({nmin*inflight + hook_stores})")
        cur.append("  s_barrier")
        stamp(cur, 1)
        issued = 0; done = 0
        pend_dma = []
        started = set()
        for u, (st, ks, o, i) in enumerate(slots):
            nxt = st + 1
            if nxt < nst and u == nxt * per_stage - LB:
                epochs.append(cur); cur = []
                infl = max(0, min(NS - 2, nst - 1 - nxt))
                cur.append(f"  s_waitcnt vmcnt({nmin*infl}) lgkmcnt(0)")
                done = issued
                cur.append("  s_barrier")
                stamp(cur, None)
                sl = nxt % NS
                delta = SB if sl != 0 else -(NS - 1) * SB
                for r in addr_regs:
                    if delta > 0:
                        cur.append(f"  v_add_u32 v{r}, {delta:#x}, v{r}")
                    else:
                        cur.append(f"  v_subrev_u32 v{r}, {-delta:#x}, v{r}")
                if st + NS < nst:
                    pend_dma = dma_ops(st % NS)
            for f in bypos.get(u, []):
                for ins in reads_for(f["kind"], f["ks"], f["idx"], f["reg"]):
                    cur.append(ins); issued += 1
                f["seq"] = issued
            fo = fmap[("o", st, ks, o)]; fi = fmap[("i", st, ks, i)]
            need = max(fo["seq"], fi["seq"])
            if need > done:
                n = min(issued - need, 15)
                cur.append(f"  s_waitcnt lgkmcnt({n})")
                done = issued - n
            fw, fx = (fo, fi) if outerW else (fi, fo)
            mi, ti = (i, o) if outerW else (o, i)
            a = accr(mi, ti)
            c = vr(a, 4) if (mi, ti) in started else "0"
            started.add((mi, ti))
            if trout:
                cur.append(f"  v_mfma_f32_16x16x32_bf16 {vr(a,4)}, {vr(fx['reg'],4)}, {vr(fw['reg'],4)}, {c}")
            else:
                cur.append(f"  v_mfma_f32_16x16x32_bf16 {vr(a,4)}, {vr(fw['reg'],4)}, {vr(fx['reg'],4)}, {c}")
            if pend_dma:
                cur.extend(pend_dma.pop(0))
        assert not pend_dma
        epochs.append(cur)
        if loop:
            compress_loop(k, epochs, NS, 33)
        else:
            for ep in epochs: k.L.extend(ep)
        k.e("s_nop 15")
        stamp(k.L, 2)
        keep = list(range(TM))
        env = dict(k=k, va=va, vl=vl, q=q, vt=vt, vt2=vt2, vt3=vt3, accr=accr, TM=TM, TN=TN, SWM=SWM, SWN=SWN, SKG=SKG)
        if WK == 2:
            H = TM // 2
            k.e("s_barrier")
            RB = H * TN * 1024
            assert 8 * RB <= lds, (8 * RB, lds)
            k.e(f"s_mul_i32 s28, s20, {RB}")
            k.e(f"v_lshlrev_b32 v{vt}, 4, v{vl}")
            k.e(f"v_add_u32 v{vt2}, s28, v{vt}")
            k.e(f"s_xor_b32 s28, s20, 4")
            k.e(f"s_mul_i32 s28, s28, {RB}")
            k.e(f"v_add_u32 v{vt3}, s28, v{vt}")
            l1 = k.newlab("kg1"); l2 = k.newlab("kgj")
            tmp = oring
            ntmp = (RO * 4 + NIS * NI * 4) // 4
            assert iring == oring + RO * 4
            for kg in range(2):
                if kg == 0:
                    k.e(f"s_cmp_eq_u32 s{SKG}, 0")
                    k.e(f"s_cbranch_scc0 {l1}")
                else:
                    k.lab(l1)
                send = range(H, TM) if kg == 0 else range(0, H)
                kp = range(0, H) if kg == 0 else range(H, TM)
                n = 0
                for mi in send:
                    for ti in range(TN):
                        k.e(f"ds_write_b128 v{vt2}, {vr(accr(mi,ti),4)} offset:{n*1024}")
                        n += 1
                k.e("s_waitcnt lgkmcnt(0)")
                k.e("s_barrier")
                lst = [(mi, ti) for mi in kp for ti in range(TN)]
                for b in range(0, len(lst), ntmp):
                    blk = lst[b: b + ntmp]
                    for j, (mi, ti) in enumerate(blk):
                        k.e(f"ds_read_b128 {vr(tmp+4*j,4)}, v{vt3} offset:{(b+j)*1024}")
                    for j, (mi, ti) in enumerate(blk):
                        k.e(f"s_waitcnt lgkmcnt({min(len(blk)-1-j,15)})")
                        for r in range(4):
                            k.e(f"v_add_f32 v{accr(mi,ti)+r}, v{accr(mi,ti)+r}, v{tmp+4*j+r}")
                epi(env, list(kp))
                if kg == 0:
                    k.e(f"s_branch {lend}_d")
        else:
            epi(env, keep)
    if epi_alt is None:
        body(False, epi)
    else:
        lalt = k.newlab("alt")
        k.e("s_cmp_eq_u32 s27, 0")
        k.e(f"s_cbranch_scc0 {lalt}")
        body(False, epi)
        k.e(f"s_branch {lend}_d")
        k.lab(lalt)
        body(True, epi_alt)
    k.lab(lend + "_d")
    if dbg:
        k.e("s_waitcnt vmcnt(0)")
        stamp(k.L, 3)
        k.e("s_memrealtime s[54:55]")
        k.e("s_waitcnt lgkmcnt(0)")
        k.e(f"v_writelane_b32 v{vst}, s54, 63")
        k.e("s_lshl_b32 s46, s2, 3")
        k.e("s_add_u32 s46, s46, s20")
        k.e("s_lshl_b32 s46, s46, 9")
        mk_srd(k, 16, 40, off_sgpr=46, off_imm=DBG_OFF, size=512)
        k.e(f"v_lshlrev_b32 v{vt}, 2, v{vl}")
        k.e(f"buffer_store_dword v{vst}, v{vt}, s[16:19], 0 offen")
    k.lab(lend)
    k.e("s_endpgm")
    return k, lds
```

```python
import sys, json
from gen_common import *
from gen_gemm import gen_gemm
from gen_kernels import *
try:
    from gen_attn import gen_attn
except ImportError:
    gen_attn = None

def build(opts):
    import os
    V = os.environ.get("VAR", "a")
    ks = []
    k1, l1 = gen_gemm("kvproj_kernel", 256, 256, 2, 4, 1, 2, 8, 256, k1_map, "nat", epi_kv, 1024, 8192, pre_hook=k1_hook, epi_alt=epi_vt)
    ks.append((k1, l1, 256, 512))
    if gen_attn:
        k2, l2 = gen_attn("attn_kernel")
        ks.append((k2, l2, 256, 512))
    k3, l3 = gen_gemm("oproj_kernel", 128, 144, *((8, 1, 1) if "b" in V else (4, 1, 2)), 3, 16, 256, mk_splitk_map("ctx", 8192, "wo", 1024, "p1"), "s32", epi_part, 8192, 1152)
    ks.append((k3, l3, 256, 512))
    k4, l4 = gen_reduce("red1_kernel", 4, "p1", False)
    ks.append((k4, l4, 256, 512))
    k5, l5 = gen_gemm("ffn1_kernel", 256, 144, *((8, 1, 1) if "a" in V else (4, 1, 2)), 3, 9, 256, k5_map, "nat", epi_act, 1152, 9216, pre_hook=k5_hook)
    ks.append((k5, l5, 256, 512))
    k6, l6 = gen_gemm("ffn2_kernel", 128, 144, *((8, 1, 1) if "b" in V else (4, 1, 2)), 3, 18, 256, mk_splitk_map("act", 9216, "w2", 1152, "p2"), "s32", epi_part, 9216, 1152)
    ks.append((k6, l6, 256, 512))
    k7, l7 = gen_reduce("red2_kernel", 4, "p2", True)
    ks.append((k7, l7, 256, 512))
    return ks

def main():
    out = sys.argv[1] if len(sys.argv) > 1 else f"cdna_kernels/{NAME}.s"
    ks = build({})
    hdr = open(f"cdna_kernels/{NAME}.s.ref").read().split("\n")
    lines = [l for l in hdr if l.startswith(";") and "@launch" not in l and "Override launch" not in l and "grid=ceil" not in l]
    txt = "\n".join(lines[:16]) + "\n"
    for k, lds, g, b in ks:
        txt += f"; @launch kernel={k.name} grid=({g},1,1) block=({b},1,1) lds={lds}\n"
    txt += '.amdgcn_target "amdgcn-amd-amdhsa--gfx950"\n.text\n'
    for k, *_ in ks:
        txt += k.text()
    txt += '.section .rodata,"a"\n'
    for k, *_ in ks:
        txt += k.desc()
    import os, re
    sf = os.environ.get("STFLAG", "")
    if sf:
        txt = re.sub(r"(buffer_store_dwordx[24] .*offen(?: offset:\d+)?)\n", lambda m: m.group(1) + " " + sf + "\n", txt)
    open(out, "w").write(txt)
    lay = {"xn": (WS["xn"], 2048, 576, "nat"), "k": (WS["k"], 2048, 4096, "s32"), "v": (WS["v"], 4096, 2048, "vt"),
           "ctx": (WS["ctx"], 2048, 4096, "s32"), "h": (WS["h"], 2048, 576, "nat"), "hn": (WS["hn"], 2048, 576, "nat"),
           "act": (WS["act"], 2048, 4608, "s32")}
    json.dump(lay, open("layout.json", "w"))
    for k, lds, g, b in ks:
        print(k.name, "vgpr", k.nv, "lds", lds, "instrs", len(k.L))
main()
```

```python
from gen_common import *
import struct, os
DBG = bool(os.environ.get("ATTN_DBG"))
DBG_OFF = 200 * 1024 * 1024

def f2u(x):
    return struct.unpack("<I", struct.pack("<f", x))[0]

KBASE = 0
VBASE = 65536
XTRA = 131072
SLOT = 16384
LDS_TOTAL = 163840

class LdsQ:
    def __init__(self): self.issued = 0; self.done = 0
    def issue(self, n=1):
        self.issued += n; return self.issued
    def need(self, out, seq):
        if seq > self.done:
            n = min(self.issued - seq, 15)
            out.append(f"  s_waitcnt lgkmcnt({n})")
            self.done = self.issued - n
    def drain(self): self.done = self.issued

def gen_attn(name, RATE=4.4, GBAR=26, DGAPS=(1, 5, 9, 13)):
    k = Kern(name); k.uses(56); k.usev(256)
    lend = name + "_end"
    e = k.e
    L = k.L
    vl = 1; vt = 2; vt2 = 3; vt3 = 4
    vKA = list(range(5, 13)); vVA = list(range(13, 17)); vDK = [17, 18]; vDV = [19, 20]
    vsum = 22; vmk = 23; vneg = 24; va_ = 25; vb_ = 26; vd = 28; vout = 29
    O = 32; S = [96, 128]; Q = 160; FR = 192; NM = 232
    R = 8
    pWA = list(range(96, 104)); pXA = list(range(104, 112)); pDX = [112, 113]; pDW = [114, 115]
    AR = 128; BR = 144
    STH = 31
    e("s_cmp_ge_u32 s2, 256")
    e(f"s_cbranch_scc1 {lend}")
    e(f"s_load_dwordx2 s[40:41], s[0:1], {KA['ws']}")
    e(f"s_load_dwordx2 s[42:43], s[0:1], {KA['wq']}")
    e(f"v_lshrrev_b32 v{vt}, 6, v0")
    e(f"v_and_b32 v{vl}, 63, v0")
    if DBG:
        e("s_memtime s[50:51]")
        e("v_mov_b32 v30, 0")
        e("v_mov_b32 v31, 0")
        e("s_memrealtime s[52:53]")
        e("s_waitcnt lgkmcnt(0)")
        e("v_writelane_b32 v30, s50, 0")
        e("v_writelane_b32 v31, s52, 0")
    e(f"v_readfirstlane_b32 s20, v{vt}")
    e("s_and_b32 s44, s2, 7")
    e("s_lshr_b32 s45, s2, 3")
    e("s_and_b32 s46, s45, 3")
    e("s_lshl_b32 s44, s44, 2")
    e("s_add_u32 s44, s44, s46")
    e("s_lshr_b32 s45, s45, 2")
    e("s_lshl_b32 s21, s20, 10")
    e("s_sub_u32 s46, 15, s45")
    e("s_lshl_b32 s46, s46, 7")
    e("s_lshl_b32 s47, s20, 5")
    e("s_add_u32 s46, s46, s47")
    e("s_lshl_b32 s47, s45, 7")
    e("s_sub_u32 s48, 7, s20")
    e("s_lshl_b32 s48, s48, 5")
    e("s_add_u32 s47, s47, s48")
    e("s_cmp_lt_u32 s20, 4")
    e("s_cselect_b32 s22, s46, s47")
    e("s_lshr_b32 s23, s22, 6")
    e("s_lshl_b32 s24, s45, 1")
    e("s_sub_u32 s24, 32, s24")
    e("s_sub_u32 s28, s24, 3")
    e("s_sub_u32 s29, s24, 4")
    e("s_lshl_b32 s49, s44, 19")
    e("s_lshl_b32 s44, s44, 8")
    e(f"s_mov_b32 s{STH}, {f2u(30.0):#x}")
    e(f"v_lshrrev_b32 v{vt}, 4, v{vl}")
    e("s_lshl_b32 s46, s20, 2")
    e(f"v_add_u32 v{vt2}, s46, v{vt}")
    e(f"v_xor_b32 v{vt3}, v{vt2}, v{vl}")
    e(f"v_and_b32 v{vt3}, 15, v{vt3}")
    e(f"v_lshlrev_b32 v{vt3}, 4, v{vt3}")
    e(f"v_lshl_add_u32 v{vDK[0]}, v{vt2}, 13, v{vt3}")
    e(f"v_add_u32 v{vDK[1]}, 0x40000, v{vDK[0]}")
    e(f"v_lshlrev_b32 v{vt3}, 2, v{vt}")
    e(f"v_xor_b32 v{vt3}, v{vt3}, v{vl}")
    e(f"v_and_b32 v{vt3}, 15, v{vt3}")
    e(f"v_lshlrev_b32 v{vt3}, 4, v{vt3}")
    e(f"v_lshl_add_u32 v{pDW[0]}, v{vt2}, 13, v{vt3}")
    e(f"v_add_u32 v{pDW[1]}, 0x40000, v{pDW[0]}")
    e(f"v_xor_b32 v{vt3}, v{vt}, v{vl}")
    e(f"v_and_b32 v{vt3}, 7, v{vt3}")
    e(f"v_lshlrev_b32 v{vt3}, 4, v{vt3}")
    e(f"v_xor_b32 v{va_}, 64, v{vt3}")
    e(f"v_lshrrev_b32 v{vb_}, 3, v{vl}")
    e(f"v_mul_u32_u24 v{vd}, 1152, v{vb_}")
    e(f"v_add_u32 v{pDX[0]}, v{vd}, v{vt3}")
    e(f"v_add_u32 v{pDX[1]}, v{vd}, v{va_}")
    e("s_and_b32 s46, s20, 1")
    e("s_lshl_b32 s46, s46, 6")
    e(f"v_xor_b32 v{vt3}, s46, v{vt3}")
    e("s_lshl_b32 s46, s20, 3")
    e(f"v_add_u32 v{vb_}, s46, v{vb_}")
    e(f"v_lshl_add_u32 v{vDV[0]}, v{vb_}, 12, v{vt3}")
    e(f"v_add_u32 v{vDV[1]}, 0x40000, v{vDV[0]}")
    e("s_waitcnt lgkmcnt(0)")
    e(f"s_sub_u32 s47, {SZ_KV}, s44")
    mk_srd(k, 4, 40, off_sgpr=44, off_imm=WS['k'], size_sgpr=47)
    e(f"s_sub_u32 s47, {SZ_KV}, s49")
    mk_srd(k, 8, 40, off_sgpr=49, off_imm=WS['v'], size_sgpr=47)
    e(f"s_sub_u32 s47, {576*8192}, s44")
    mk_srd(k, 12, 42, off_sgpr=44, size_sgpr=47)
    e("s_mul_i32 s46, s22, 1152")
    if WS['xn']:
        mk_srd(k, 16, 40, off_sgpr=46, off_imm=WS['xn'], size=32 * 1152)
    else:
        mk_srd(k, 16, 40, off_sgpr=46, size=32 * 1152)
    e("s_lshl_b32 s33, s20, 12")
    vm_ops = []
    def vm_issue(tag): vm_ops.append(tag)
    def vm_wait_for(tag):
        idx = max(i for i, t in enumerate(vm_ops) if t == tag)
        return len(vm_ops) - 1 - idx
    def dma(kind, ldsbase, soff):
        o = []
        vv = {"K": vDK, "V": vDV, "W": pDW}[kind]
        srd = {"K": "s[4:7]", "V": "s[8:11]", "W": "s[12:15]"}[kind]
        for j in range(2):
            o.append([f"  s_add_u32 m0, s21, {ldsbase + 8192*j:#x}", "  s_nop 0",
                      f"  buffer_load_dwordx4 v{vv[j]}, {srd}, {soff} offen lds"])
        return o
    XSL = [KBASE + 2 * SLOT, XTRA]; WSL = [VBASE + 2 * SLOT, VBASE + 3 * SLOT]
    def tile_soff(kind, tile):
        return tile * 128 if kind == "V" else tile * 64 * 8192
    def issue_static(kind, tile, ldsbase, out=None):
        out = L if out is None else out
        out.append(f"  s_mov_b32 s46, {tile_soff(kind, tile):#x}")
        for g in dma(kind, ldsbase, "s46"):
            out.extend(g); vm_issue((kind, tile))
    def issue_qstage(u, out=None):
        out = L if out is None else out
        for j in range(4):
            out.append(f"  s_add_u32 m0, s33, {XSL[u%2] + 1024*j:#x}")
            out.append(f"  s_mov_b32 s46, {u*128 + 9216*j:#x}")
            out.append(f"  buffer_load_dwordx4 v{pDX[j%2]}, s[16:19], s46 offen lds")
            vm_issue(("Q", u))
        issue_static("W", u, WSL[u % 2], out)
        vm_ops[-1] = vm_ops[-2] = ("Q", u)
    issue_qstage(0); issue_qstage(1)
    vr_ = vt; vh = vt2
    e(f"v_bfe_u32 v{vr_}, v{vl}, 2, 2")
    e(f"v_lshrrev_b32 v{vh}, 5, v{vl}")
    e(f"v_bfe_u32 v{vt3}, v{vl}, 4, 1")
    e(f"v_lshlrev_b32 v{vt3}, 5, v{vt3}")
    e(f"v_and_b32 v{va_}, 3, v{vl}")
    e(f"v_lshl_add_u32 v{vt3}, v{va_}, 3, v{vt3}")
    e(f"v_lshl_add_u32 v{va_}, v{vh}, 3, v{vr_}")
    e(f"v_lshl_add_u32 v{va_}, v{va_}, 8, v{vt3}")
    for T in range(4):
        e(f"v_xor_b32 v{vt3}, {T}, v{vr_}")
        e(f"v_lshl_add_u32 v{vd}, v{vt3}, 6, v{va_}")
        e(f"v_add_u32 v{pWA[T]}, {WSL[0]:#x}, v{vd}")
    e(f"v_and_b32 v{va_}, 31, v{vl}")
    e(f"v_lshrrev_b32 v{vb_}, 1, v{va_}")
    e(f"v_xor_b32 v{vb_}, v{vb_}, v{vh}")
    e(f"v_and_b32 v{vb_}, 7, v{vb_}")
    e(f"v_lshlrev_b32 v{va_}, 7, v{va_}")
    for c in range(4):
        e(f"v_xor_b32 v{vt3}, {2*c}, v{vb_}")
        e(f"v_lshl_add_u32 v{vd}, v{vt3}, 4, v{va_}")
        e(f"v_add_u32 v{vVA[c]}, {VBASE:#x}, v{vd}")
        e(f"v_add_u32 v{vd}, s33, v{vd}")
        e(f"v_add_u32 v{pXA[c]}, {XSL[0]:#x}, v{vd}")
        e(f"v_add_u32 v{pXA[4+c]}, {XSL[1]:#x}, v{vd}")
    lq = LdsQ()
    fr = [(u, tq, T) for u in range(9) for tq in range(4) for T in range(4)]
    def w_reads(n):
        u, tq, T = fr[n]
        off = (u % 2) * SLOT + tq * 16 * 256
        r = AR + (n % 4) * 4
        return [f"  ds_read_b64_tr_b16 {vr(r,2)}, v{pWA[T]} offset:{off}",
                f"  ds_read_b64_tr_b16 {vr(r+2,2)}, v{pWA[T]} offset:{off+1024}"]
    def x_read(u, tq):
        return f"  ds_read_b128 {vr(BR+((u%2)*4+tq)*4,4)}, v{pXA[(u%2)*4+tq]}"
    seq = {}; xseq = {}
    LAW = 3
    e(f"s_waitcnt vmcnt({vm_wait_for(('Q',0))})")
    e("s_barrier")
    if DBG:
        e("s_memtime s[50:51]"); e("s_waitcnt lgkmcnt(0)"); e("v_writelane_b32 v30, s50, 1")
    L.append(x_read(0, 0)); xseq[(0, 0)] = lq.issue()
    for n in range(LAW):
        L.extend(w_reads(n)); seq[n] = lq.issue(2)
    for tq in range(1, 4):
        L.append(x_read(0, tq)); xseq[(0, tq)] = lq.issue()
    started = set()
    pend = []
    for n, (u, tq, T) in enumerate(fr):
        nn = n + LAW
        if nn < len(fr) and fr[nn][0] != fr[nn - 1][0]:
            un = fr[nn][0]
            e(f"s_waitcnt vmcnt({vm_wait_for(('Q',un))}) lgkmcnt(0)")
            lq.drain()
            e("s_barrier")
            for t2 in range(4):
                L.append(x_read(un, t2)); xseq[(un, t2)] = lq.issue()
            if un + 1 < 9:
                issue_qstage(un + 1, pend)
            if un == 5:
                issue_static("K", 0, KBASE, pend); issue_static("V", 0, VBASE, pend)
            if un == 7:
                issue_static("K", 1, KBASE + SLOT, pend); issue_static("V", 1, VBASE + SLOT, pend)
        lq.need(L, max(seq[n], xseq[(u, tq)]))
        a = O + 16 * T
        c = vr(a, 16) if T in started else "0"
        started.add(T)
        e(f"v_mfma_f32_32x32x16_bf16 {vr(a,16)}, {vr(AR+(n%4)*4,4)}, {vr(BR+((u%2)*4+tq)*4,4)}, {c}")
        if nn < len(fr):
            L.extend(w_reads(nn)); seq[nn] = lq.issue(2)
        L.extend(pend[:4]); pend = pend[4:]
    L.extend(pend)
    e(f"s_waitcnt vmcnt({vm_wait_for(('K',0))}) lgkmcnt(0)")
    e("s_barrier")
    if DBG:
        e("s_memtime s[50:51]"); e("s_waitcnt lgkmcnt(0)"); e("v_writelane_b32 v30, s50, 2")
    for kind, tile in [("K", 2), ("V", 2), ("K", 3)]:
        issue_static(kind, tile, (KBASE if kind == "K" else VBASE) + tile * SLOT)
    e(f"v_and_b32 v{vt}, 31, v{vl}")
    e(f"v_lshlrev_b32 v{vt}, 8, v{vt}")
    e(f"v_lshrrev_b32 v{vt2}, 5, v{vl}")
    e(f"v_xor_b32 v{vt2}, v{vt2}, v{vl}")
    e(f"v_and_b32 v{vt2}, 15, v{vt2}")
    for c in range(8):
        e(f"v_xor_b32 v{vt3}, {2*c}, v{vt2}")
        e(f"v_lshl_add_u32 v{vKA[c]}, v{vt3}, 4, v{vt}")
    def k_read(slot, n):
        sub, c = n // 8, n % 8
        return f"  ds_read_b128 {vr(FR+(n%R)*4,4)}, v{vKA[c]} offset:{KBASE + slot*SLOT + sub*8192}"
    lq = LdsQ()
    seq = {}
    for n in range(R):
        L.append(k_read(0, n)); seq[n] = lq.issue()
    e(f"v_and_b32 v{vmk}, 31, v{vl}")
    e("s_and_b32 s46, s22, 32")
    e(f"v_add_u32 v{vmk}, s46, v{vmk}")
    e(f"v_lshrrev_b32 v{vt2}, 5, v{vl}")
    e(f"v_lshlrev_b32 v{vt2}, 2, v{vt2}")
    e(f"v_sub_u32 v{vmk}, v{vmk}, v{vt2}")
    e(f"v_mov_b32 v{vneg}, 0xff800000")
    e(f"s_mov_b32 s46, {f2u(128 ** -0.5 * 1.4426950408889634):#x}")
    for T in range(4):
        for i in range(16):
            e(f"v_mul_f32 v{O+16*T+i}, s46, v{O+16*T+i}")
        for ee in range(2):
            d = Q + (2 * T + ee) * 4; a = O + 16 * T + 4 * ee
            e(f"v_cvt_pk_bf16_f32 v{d}, v{a}, v{a+1}")
            e(f"v_cvt_pk_bf16_f32 v{d+1}, v{a+2}, v{a+3}")
            e(f"v_cvt_pk_bf16_f32 v{d+2}, v{a+8}, v{a+9}")
            e(f"v_cvt_pk_bf16_f32 v{d+3}, v{a+10}, v{a+11}")
    e(f"v_mov_b32 v{vsum}, 0")

    def qk_mfma(sb, n, first=False):
        sub, c = n // 8, n % 8
        a = S[sb] + 16 * sub
        cc = vr(a, 16) if c else ("0" if first else vr(NM, 16))
        return f"  v_mfma_f32_32x32x16_bf16 {vr(a,16)}, {vr(FR+(n%R)*4,4)}, {vr(Q+4*c,4)}, {cc}"
    def v_read(slot, m):
        ks, T = m // 4, m % 4
        return f"  ds_read_b128 {vr(FR+(m%R)*4,4)}, v{vVA[ks]} offset:{slot*SLOT + T*4096}"
    def preg(sb, ks):
        return S[sb] + 16 * (ks >> 1) + 4 * (ks & 1)
    def pv_mfma(sb, m):
        ks, T = m // 4, m % 4
        a = O + 16 * T
        return f"  v_mfma_f32_32x32x16_bf16 {vr(a,16)}, {vr(FR+(m%R)*4,4)}, {vr(preg(sb,ks),4)}, {vr(a,16)}"
    def exp_ops(sb, ks):
        b = preg(sb, ks)
        src = [b, b + 2, b + 8, b + 10]
        ops = []
        pend = []
        for j in range(4):
            x, y = src[j], src[j] + 1
            ops.append((2, f"  v_exp_f32 v{x}, v{x}"))
            ops.append((2, f"  v_exp_f32 v{y}, v{y}"))
            ops.extend(pend)
            pend = [(1, f"  v_add_f32 v{vsum}, v{vsum}, v{x}"),
                    (1, f"  v_add_f32 v{vsum}, v{vsum}, v{y}"),
                    (1, f"  v_cvt_pk_bf16_f32 v{b+j}, v{x}, v{y}")]
        return ops, pend
    def exp_all(sb, kss):
        ops = []; pend = []
        marks = {}
        for ks in kss:
            o, p = exp_ops(sb, ks)
            ops.extend(o[:2]); ops.extend(pend); ops.extend(o[2:])
            pend = p
        ops.append((1, "  s_nop 0"))
        ops.extend(pend)
        return ops
    def max_ops(sb):
        ops = []
        for sub, acc in ((0, va_), (1, vb_)):
            b = S[sb] + 16 * sub
            ops.append((1, f"  v_max3_f32 v{acc}, v{b}, v{b+1}, v{b+2}"))
            for j in range(3, 15, 2):
                ops.append((1, f"  v_max3_f32 v{acc}, v{acc}, v{b+j}, v{b+j+1}"))
        ops.append((1, f"  v_max3_f32 v{va_}, v{va_}, v{S[sb]+15}, v{S[sb]+31}"))
        ops.append((1, f"  v_max_f32 v{va_}, v{va_}, v{vb_}"))
        ops.append((1, f"  v_cmp_lt_f32 vcc, s{STH}, v{va_}"))
        return ops
    def xhalf_max():
        return [f"  v_mov_b32 v{vb_}, v{va_}", "  s_nop 1", f"  v_permlane32_swap_b32 v{va_}, v{vb_}", "  s_nop 1",
                f"  v_max_f32 v{va_}, v{va_}, v{vb_}"]
    def mask_block(sb):
        o = ["  s_nop 7", "  s_nop 3"]
        items = []
        for sub in range(2):
            for i in range(16):
                g, r = i >> 2, i & 3
                items.append((S[sb] + 16 * sub + i, 32 * sub + 8 * g + r))
        pairs = [34, 36, 38]
        n = len(items)
        for i in range(n + 2):
            if i < n:
                o.append(f"  v_cmp_gt_i32 s[{pairs[i%3]}:{pairs[i%3]+1}], {items[i][1]}, v{vmk}")
            if i >= 2:
                reg = items[i - 2][0]; p = pairs[(i - 2) % 3]
                if i >= n: o.append("  s_nop 0")
                o.append(f"  v_cndmask_b32 v{reg}, v{reg}, v{vneg}, s[{p}:{p+1}]")
        return o
    def rare_block(sn):
        o = [f"  s_cbranch_vccz 2f", "  s_nop 7", "  s_nop 3"] + xhalf_max() + [
             f"  v_max_f32 v{va_}, 0, v{va_}", f"  v_sub_f32 v{vd}, 0, v{va_}", f"  v_exp_f32 v{vd}, v{vd}"]
        for i in range(32):
            o.append(f"  v_sub_f32 v{S[sn]+i}, v{S[sn]+i}, v{va_}")
        for i in range(16):
            o.append(f"  v_sub_f32 v{NM+i}, v{NM+i}, v{va_}")
        for i in range(64):
            o.append(f"  v_mul_f32 v{O+i}, v{O+i}, v{vd}")
        o.append(f"  v_mul_f32 v{vsum}, v{vsum}, v{vd}")
        o.append("  s_nop 1")
        o.append("2:")
        return o
    def barrier_block(lq, out):
        if DBG:
            out.append("  s_memtime s[50:51]")
        out.append("  s_waitcnt vmcnt(8) lgkmcnt(0)")
        out.append("  s_barrier")
        if DBG:
            out.append("  s_memtime s[52:53]")
            out.append("  s_add_u32 m0, s25, 4")
            out.append("  s_nop 0")
            out.append("  v_writelane_b32 v30, s50, m0")
            out.append("  s_waitcnt lgkmcnt(0)")
            out.append("  v_writelane_b32 v31, s52, m0")
        lq.drain()
    def dma_after(sslot):
        g = []
        kk = dma("K", KBASE + sslot * SLOT, "s26")
        vv = dma("V", VBASE + ((sslot + 3) % 4) * SLOT, "s27")
        for x in kk + vv:
            g.append([x[0], x[2]])
        g[3] += ["  s_add_u32 s26, s26, 0x80000", "  s_add_u32 s27, s27, 128"]
        return g

    for n in range(16):
        lq.need(L, seq[n])
        L.append(qk_mfma(0, n, first=True))
        if n + R < 16:
            L.append(k_read(0, n + R)); seq[n + R] = lq.issue()
        for i in range(4):
            e(f"v_mov_b32 v{O+4*n+i}, 0")
    e("s_cmp_eq_u32 s23, 0")
    e("s_cbranch_scc0 6f")
    L.extend(mask_block(0))
    k.lab("6")
    e("s_nop 7"); e("s_nop 3")
    for c_, ins in max_ops(0):
        L.append(ins)
    L.extend(xhalf_max())
    for i in range(32):
        e(f"v_sub_f32 v{S[0]+i}, v{S[0]+i}, v{va_}")
    for i in range(16):
        e(f"v_sub_f32 v{NM+i}, 0, v{va_}")
    e("s_mov_b32 s25, 0")
    e(f"s_mov_b32 s26, {4*64*8192:#x}")
    e(f"s_mov_b32 s27, {3*128:#x}")
    barrier_block(lq, L)
    for n in range(R):
        L.append(k_read(1, n))
    lfin = [f"{name}_fin{p}" for p in range(4)]
    lbody = [f"{name}_body{p}" for p in range(4)]
    e("s_cmp_eq_u32 s23, 0")
    e(f"s_cbranch_scc1 {lfin[0]}")

    for p in range(4):
        k.lab(lbody[p])
        sb = p % 2; sn = (p + 1) % 2
        kslot = (p + 1) % 4; vslot = p
        lq = LdsQ()
        fseq = {}
        for n in range(R): fseq[n] = lq.issue()
        valu = exp_all(sb, range(4))
        mops = max_ops(sn)
        vi = 0; spent = 0.0
        post = dma_after(p)
        for g in range(32):
            lq.need(L, fseq[min(g + (3 - g % 4), 31) if g >= 4 else min(g + (1 - g % 2), 31)])
            if g in DGAPS:
                L.append(post[0][0])
            L.append(qk_mfma(sn, g) if g < 16 else pv_mfma(sb, g - 16))
            n = g + R
            if n < 16:
                L.append(k_read(kslot, n)); fseq[n] = lq.issue()
            elif n < 32:
                L.append(v_read(vslot, n - 16)); fseq[n] = lq.issue()
            elif g > GBAR:
                L.append(k_read((p + 2) % 4, n - 32)); lq.issue()
            if g == 17:
                e(f"s_add_u32 s25, s25, 1")
                e("s_cmp_eq_u32 s25, s23")
                e("s_cbranch_scc0 6f")
                L.extend(mask_block(sn))
                k.lab("6")
                valu += mops
            if g == GBAR:
                barrier_block(lq, L)
                for n in range(GBAR + R - 31):
                    L.append(k_read((p + 2) % 4, n)); lq.issue()
            if g in DGAPS:
                L.extend(post.pop(0)[1:])
            target = RATE * (g + 1)
            while vi < len(valu) and (spent < target or g == 31):
                c_, ins = valu[vi]; vi += 1
                L.append(ins); spent += c_
        assert vi == len(valu) and not post
        L.extend(rare_block(sn))
        e("s_cmp_eq_u32 s25, s23")
        e(f"s_cbranch_scc1 {lfin[(p+1)%4]}")
        if p == 3:
            e(f"s_branch {lbody[0]}")
    lload = name + "_loader"
    for p in range(4):
        k.lab(lfin[p])
        sb = p % 2; vslot = p
        e("s_waitcnt lgkmcnt(0)")
        lq = LdsQ()
        vseq = {}
        for m in range(R):
            L.append(v_read(vslot, m)); vseq[m] = lq.issue()
        for c_, ins in exp_all(sb, [0]): L.append(ins)
        e("s_nop 1")
        post = dma_after(p)
        for m in range(16):
            lq.need(L, vseq[m])
            if m % 4 == 1: L.append(post[0][0])
            L.append(pv_mfma(sb, m))
            if m % 4 == 1: L.extend(post.pop(0)[1:])
            if m + R < 16:
                L.append(v_read(vslot, m + R)); vseq[m + R] = lq.issue()
            ks = m // 4 + 1
            if ks < 4:
                if m % 4 == 0:
                    rest = exp_all(sb, [ks])
                n3 = (len(rest) + 2) // 3
                for c_, ins in rest[(m % 4) * n3: (m % 4 + 1) * n3]:
                    L.append(ins)
                if m % 4 == 3: e("s_nop 1")
        if p < 3: e(f"s_branch {lload}")
    k.lab(lload)
    lepi = name + "_epi"
    if "p" in os.environ.get("VAR", "aph"):
        e("s_cmp_lt_u32 s20, 4")
        e(f"s_cbranch_scc1 {lload}_l")
        e(f"s_load_dwordx2 s[34:35], s[0:1], {KA['wo']}")
        e(f"s_load_dwordx2 s[36:37], s[0:1], {KA['w1']}")
        e(f"s_load_dwordx2 s[38:39], s[0:1], {KA['w2']}")
        e("s_lshl_b32 s46, s2, 2")
        e("s_add_u32 s46, s46, s20")
        e("s_sub_u32 s46, s46, 4")
        e("s_mul_i32 s46, s46, 6144")
        e(f"v_lshlrev_b32 v{vt}, 4, v{vl}")
        e("s_waitcnt lgkmcnt(0)")
        for ptr, sz in ((34, 4096 * 1152), (36, 576 * 9216), (38, 4608 * 1152)):
            mk_srd(k, 12, ptr, size=sz)
            e("s_add_u32 s47, s46, 4096")
            for j in range(6):
                so = "s46" if j < 4 else "s47"
                e(f"buffer_load_dwordx4 v[248:251], v{vt}, s[12:15], {so} offen offset:{1024*(j%4)}")
        k.lab(lload + "_l")
    lload = lload + "_l" if "p" in os.environ.get("VAR", "aph") else lload
    e("s_add_u32 s25, s25, 1")
    e("s_cmp_ge_u32 s25, s24")
    e(f"s_cbranch_scc1 {lepi}")
    lq = LdsQ()
    barrier_block(lq, L)
    e("s_and_b32 s47, s25, 3")
    e("s_lshl_b32 s47, s47, 14")
    e("s_add_u32 s47, s47, s21")
    for j in range(2):
        e(f"s_add_u32 m0, s47, {KBASE + 8192*j:#x}")
        e("s_nop 0")
        e(f"buffer_load_dwordx4 v{vDK[j]}, s[4:7], s26 offen lds")
    e("s_add_u32 s46, s25, 3")
    e("s_and_b32 s47, s46, 3")
    e("s_lshl_b32 s47, s47, 14")
    e("s_add_u32 s47, s47, s21")
    for j in range(2):
        e(f"s_add_u32 m0, s47, {VBASE + 8192*j:#x}")
        e("s_nop 0")
        e(f"buffer_load_dwordx4 v{vDV[j]}, s[8:11], s27 offen lds")
    e("s_add_u32 s26, s26, 0x80000")
    e("s_add_u32 s27, s27, 128")
    e(f"s_branch {lload}")
    k.lab(lepi)
    e("s_waitcnt vmcnt(0)")
    e("s_barrier")
    e("s_lshl_b32 s46, s22, 13")
    e("s_add_u32 s46, s46, s44")
    e(f"s_sub_u32 s47, {SZ_KV}, s46")
    mk_srd(k, 16, 40, off_sgpr=46, off_imm=WS['ctx'], size_sgpr=47)
    e(f"v_mov_b32 v{vb_}, v{vsum}")
    e("s_lshl_b32 s33, s20, 13")
    e("s_nop 0")
    e(f"v_permlane32_swap_b32 v{vsum}, v{vb_}")
    e("s_nop 1")
    e(f"v_add_f32 v{vsum}, v{vsum}, v{vb_}")
    e(f"v_rcp_f32 v{vsum}, v{vsum}")
    for c in range(8):
        e(f"v_add_u32 v{vKA[c]}, s33, v{vKA[c]}")
    e(f"v_lshlrev_b32 v{vt}, 4, v{vl}")
    e(f"v_add_u32 v{vt}, s33, v{vt}")
    e(f"v_lshrrev_b32 v{vt2}, 4, v{vl}")
    for T in range(4):
        for ee in range(2):
            a = O + 16 * T + 4 * ee
            for i in (0, 1, 2, 3, 8, 9, 10, 11):
                e(f"v_mul_f32 v{a+i}, v{a+i}, v{vsum}")
            e(f"v_cvt_pk_bf16_f32 v{a}, v{a}, v{a+1}")
            e(f"v_cvt_pk_bf16_f32 v{a+1}, v{a+2}, v{a+3}")
            e(f"v_cvt_pk_bf16_f32 v{a+2}, v{a+8}, v{a+9}")
            e(f"v_cvt_pk_bf16_f32 v{a+3}, v{a+10}, v{a+11}")
            e(f"ds_write_b128 v{vKA[2*T+ee]}, {vr(a,4)}")
    for jj in range(4):
        e(f"v_add_u32 v{vt3}, {4*jj}, v{vt2}")
        e(f"v_xor_b32 v{vd}, v{vt3}, v{vl}")
        e(f"v_and_b32 v{vd}, 15, v{vd}")
        e(f"v_lshlrev_b32 v{vd}, 4, v{vd}")
        e(f"v_lshl_add_u32 v{vVA[jj]}, v{vt3}, 13, v{vd}")
    e("s_waitcnt lgkmcnt(0)")
    for j in range(8):
        e(f"ds_read_b128 {vr(S[0]+4*j,4)}, v{vt} offset:{1024*j}")
    e(f"s_mov_b32 s46, {16*8192:#x}")
    for j in range(8):
        e(f"s_waitcnt lgkmcnt({7-j})")
        so = "0" if j < 4 else "s46"
        e(f"buffer_store_dwordx4 {vr(S[0]+4*j,4)}, v{vVA[j%4]}, s[16:19], {so} offen")
    if DBG:
        e("s_waitcnt vmcnt(0)")
        e("s_memtime s[50:51]")
        e("s_memrealtime s[52:53]")
        e("s_waitcnt lgkmcnt(0)")
        e("v_writelane_b32 v30, s50, 3")
        e("v_writelane_b32 v31, s52, 1")
        e("s_lshl_b32 s46, s2, 3")
        e("s_add_u32 s46, s46, s20")
        e("s_lshl_b32 s46, s46, 9")
        mk_srd(k, 16, 40, off_sgpr=46, off_imm=DBG_OFF, size=512)
        e(f"v_lshlrev_b32 v{vt}, 2, v{vl}")
        e(f"buffer_store_dword v30, v{vt}, s[16:19], 0 offen")
        e(f"buffer_store_dword v31, v{vt}, s[16:19], 0 offen offset:256")
    k.lab(lend)
    e("s_endpgm")
    return k, LDS_TOTAL
```

```python
from gen_common import *
import os
GDBG = os.environ.get("GEMM_DBG", "")
DBG_OFF = 200 * 1024 * 1024

def compress_loop(k, epochs, period, scount):
    n = len(epochs)
    best = (0, 0)
    for st in range(n):
        reps = 1
        while st + (reps + 1) * period <= n and \
                epochs[st + reps * period: st + (reps + 1) * period] == epochs[st: st + period]:
            reps += 1
        if reps > best[0]:
            best = (reps, st)
    reps, st = best
    if reps < 2:
        for ep in epochs:
            k.L.extend(ep)
        return
    for ep in epochs[:st]:
        k.L.extend(ep)
    lab = k.newlab("loop")
    k.e(f"s_mov_b32 s{scount}, {reps}")
    k.lab(lab)
    for ep in epochs[st: st + period]:
        k.L.extend(ep)
    k.e(f"s_sub_u32 s{scount}, s{scount}, 1")
    k.e(f"s_cmp_lg_u32 s{scount}, 0")
    k.e(f"s_cbranch_scc1 {lab}")
    for ep in epochs[st + reps * period:]:
        k.L.extend(ep)


def gen_gemm(name, BM, BN, WM, WN, WK, NS, nst, nwg, mapfn, xperm, epi, ldx, ldw, pre_hook=None, LA=8, loop=True, epi_alt=None):
    assert WM * WN * WK == 8
    k = Kern(name)
    k.uses(52)
    TM = BM // WM // 16
    TN = BN // WN // 16
    XB = BM * 128
    WB = 64 * BN * 2
    SB = XB + WB
    nA = BM // 8; nB = BN // 8
    T = nA + nB
    nmin = T // 8; nextra = T % 8
    lds = NS * SB
    k.e(f"s_cmp_ge_u32 s2, {nwg}")
    lend = name + "_end"
    k.e(f"s_cbranch_scc1 {lend}")
    va = VAlloc(k, 1)
    vl = va.get(); vt = va.get(); vt2 = va.get(); vt3 = va.get()
    dbg = (GDBG == name)
    vst = va.get() if dbg else None
    def stamp(out, idx):
        if not dbg: return
        out.append("  s_memtime s[50:51]")
        out.append("  s_waitcnt lgkmcnt(0)")
        if idx is None:
            out.append("  s_add_u32 s52, s52, 1")
            out.append("  s_mov_b32 m0, s52")
            out.append("  s_nop 0")
            out.append(f"  v_writelane_b32 v{vst}, s50, m0")
        else:
            out.append(f"  v_writelane_b32 v{vst}, s50, {idx}")
    if dbg:
        k.uses(56)
        k.e(f"v_mov_b32 v{vst}, 0")
        k.e("s_mov_b32 s52, 3")
        k.e("s_memrealtime s[54:55]")
        k.e("s_waitcnt lgkmcnt(0)")
        k.e(f"v_writelane_b32 v{vst}, s54, 62")
        stamp(k.L, 0)
    k.e(f"v_and_b32 v{vl}, 63, v0")
    k.e(f"v_lshrrev_b32 v{vt}, 6, v0")
    k.e("s_nop 0")
    k.e(f"v_readfirstlane_b32 s20, v{vt}")
    mapfn(k)
    k.e("s_lshl_b32 s21, s20, 10")
    k.e(f"s_and_b32 s22, s20, {WN-1}")
    k.e(f"s_lshr_b32 s23, s20, {WN.bit_length()-1}")
    k.e(f"s_and_b32 s24, s23, {WM-1}")
    k.e(f"s_lshr_b32 s25, s23, {WM.bit_length()-1}")
    SWN, SWM, SKG = 22, 24, 25
    assert nA % 8 == 0
    jA = nA // 8
    pieces = []
    jB = (nB + 7) // 8
    for j in range(jA): pieces.append(("A", j))
    for j in range(jB): pieces.append(("B", j))
    extra = None
    if nextra:
        extra = pieces.pop()
    assert len(pieces) == nmin
    voff = {}
    k.e(f"s_and_b32 s28, s20, 1")
    k.e(f"s_lshl_b32 s28, s28, 2")
    k.e(f"v_lshrrev_b32 v{vt}, 4, v{vl}")
    k.e(f"v_add_u32 v{vt}, s28, v{vt}")
    k.e(f"v_xor_b32 v{vt}, v{vt}, v{vl}")
    k.e(f"v_and_b32 v{vt}, 7, v{vt}")
    k.e(f"v_lshlrev_b32 v{vt}, 4, v{vt}")
    k.e(f"v_lshrrev_b32 v{vt2}, 3, v{vl}")
    k.e(f"s_lshl_b32 s28, s20, 3")
    k.e(f"v_add_u32 v{vt2}, s28, v{vt2}")
    k.e(f"s_mov_b32 s28, {ldx}")
    k.e(f"v_mul_lo_u32 v{vt2}, v{vt2}, s28")
    for j in range(jA):
        r = va.get(); voff[("A", j)] = r
        if j == 0:
            k.e(f"v_add_u32 v{r}, v{vt2}, v{vt}")
        else:
            k.e(f"v_add_u32 v{r}, {64*j*ldx:#x}, v{voff[('A',0)]}")
    k.e(f"s_mov_b32 s29, {ldw}")
    if BN == 256:
        k.e(f"v_lshrrev_b32 v{vt2}, 5, v{vl}")
        k.e(f"s_lshl_b32 s28, s20, 1")
        k.e(f"v_add_u32 v{vt2}, s28, v{vt2}")
        k.e(f"v_and_b32 v{vt}, 3, v{vt2}")
        k.e(f"v_lshrrev_b32 v{vt3}, 3, v{vt2}")
        k.e(f"v_lshl_or_b32 v{vt}, v{vt3}, 2, v{vt}")
        k.e(f"v_lshlrev_b32 v{vt}, 1, v{vt}")
        k.e(f"v_xor_b32 v{vt}, v{vt}, v{vl}")
        k.e(f"v_and_b32 v{vt}, 31, v{vt}")
        k.e(f"v_lshlrev_b32 v{vt}, 4, v{vt}")
        k.e(f"v_mul_lo_u32 v{vt2}, v{vt2}, s29")
        for j in range(jB):
            r = va.get(); voff[("B", j)] = r
            if j == 0:
                k.e(f"v_add_u32 v{r}, v{vt2}, v{vt}")
            else:
                k.e(f"v_add_u32 v{r}, {16*j*ldw:#x}, v{voff[('B',0)]}")
    else:
        CPR = BN // 8
        assert BN == 144
        for j in range(jB):
            r = va.get(); voff[("B", j)] = r
            k.e(f"s_lshl_b32 s28, s20, 6")
            k.e(f"s_add_u32 s28, s28, {512*j}")
            k.e(f"v_add_u32 v{vt}, s28, v{vl}")
            k.e(f"v_mul_u32_u24 v{vt2}, 3641, v{vt}")
            k.e(f"v_lshrrev_b32 v{vt2}, 16, v{vt2}")
            k.e(f"v_mul_u32_u24 v{vt3}, 18, v{vt2}")
            k.e(f"v_sub_u32 v{vt}, v{vt}, v{vt3}")
            k.e(f"v_lshlrev_b32 v{vt}, 4, v{vt}")
            if xperm == "nat":
                k.e(f"v_lshrrev_b32 v{vt3}, 1, v{vt2}")
                k.e(f"v_and_b32 v{vt3}, 4, v{vt3}")
                k.e(f"v_xor_b32 v{vt2}, v{vt2}, v{vt3}")
            k.e(f"v_mul_lo_u32 v{vt2}, v{vt2}, s29")
            k.e(f"v_add_u32 v{r}, v{vt2}, v{vt}")
    SOA, SOB = 30, 31
    k.e(f"s_mov_b32 s{SOA}, 0")
    k.e(f"s_mov_b32 s{SOB}, 0")

    def dma_ops(slot):
        ops = []
        allp = ([extra] if extra else []) + pieces
        for (kind, j) in allp:
            base = slot * SB + (0 if kind == "A" else XB) + 8192 * j
            g = [f"  s_add_u32 m0, s21, {base:#x}"]
            srd = "s[4:7]" if kind == "A" else "s[8:11]"
            so = SOA if kind == "A" else SOB
            ld = f"  buffer_load_dwordx4 v{voff[(kind,j)]}, {srd}, s{so} offen lds"
            if (kind, j) == extra:
                g = [f"  s_cmp_lt_u32 s20, {nextra}", "  s_cbranch_scc0 1f", g[0], "  s_nop 0", ld, "1:"]
            else:
                g = [g[0], "  s_nop 0", ld]
            ops.append(g)
        ops.append([f"  s_add_u32 s{SOA}, s{SOA}, 128", f"  s_add_u32 s{SOB}, s{SOB}, {64*ldw:#x}"])
        return ops
    q = va.get()
    k.e(f"v_lshrrev_b32 v{q}, 4, v{vl}")
    nks = 2 // WK
    vX = [va.get() for _ in range(nks)]
    k.e(f"v_and_b32 v{vt}, 15, v{vl}")
    k.e(f"v_lshrrev_b32 v{vt2}, 1, v{vt}")
    k.e(f"v_xor_b32 v{vt2}, v{vt2}, v{q}")
    if WK == 2:
        k.e(f"s_lshl_b32 s28, s{SKG}, 2")
        k.e(f"v_xor_b32 v{vt2}, s28, v{vt2}")
    k.e(f"v_lshlrev_b32 v{vt2}, 4, v{vt2}")
    k.e(f"s_mul_i32 s28, s{SWM}, {TM*16*128}")
    k.e(f"v_lshl_add_u32 v{vt2}, v{vt}, 7, v{vt2}")
    k.e(f"v_add_u32 v{vX[0]}, s28, v{vt2}")
    if nks == 2:
        k.e(f"v_xor_b32 v{vX[1]}, 64, v{vX[0]}")
    k.e(f"v_bfe_u32 v{vt}, v{vl}, 2, 2")
    k.e(f"v_and_b32 v{vt2}, 3, v{vl}")
    k.e(f"v_lshlrev_b32 v{vt2}, 3, v{vt2}")
    Wrd = {}
    if BN == 256:
        assert WK == 1
        vW = [va.get() for _ in range(TN)]
        k.e(f"v_lshl_add_u32 v{vt3}, v{q}, 3, v{vt}")
        k.e(f"v_lshl_add_u32 v{vt2}, v{vt3}, 9, v{vt2}")
        k.e(f"v_and_b32 v{vt3}, 1, v{q}")
        k.e(f"v_lshl_or_b32 v{vt3}, v{vt3}, 2, v{vt}")
        k.e(f"s_lshl_b32 s28, s{SWN}, 2")
        k.e(f"v_xor_b32 v{vt3}, s28, v{vt3}")
        for ti in range(TN):
            k.e(f"v_xor_b32 v{vt}, {ti}, v{vt3}")
            k.e(f"v_lshl_add_u32 v{vt}, v{vt}, 5, v{vt2}")
            k.e(f"v_add_u32 v{vW[ti]}, {XB:#x}, v{vt}")
        for ks in range(2):
            for ti in range(TN):
                for s in range(2):
                    Wrd[(ks, ti, s)] = (vW[ti], ks * 32 * 512 + s * 4 * 512)
    else:
        assert WN == 1
        RS = BN * 2
        if xperm == "nat":
            vW = [va.get() for _ in range(2)]
            k.e(f"v_and_b32 v{vt3}, 1, v{q}")
            k.e(f"v_lshl_add_u32 v{vt3}, v{vt3}, 2, v{vt}")
            k.e(f"v_lshl_add_u32 v{vt3}, v{q}, 3, v{vt3}")
            k.e(f"v_mul_u32_u24 v{vt}, {RS}, v{vt3}")
            k.e(f"v_add_u32 v{vW[0]}, v{vt}, v{vt2}")
            k.e(f"v_xor_b32 v{vt3}, 4, v{vt3}")
            k.e(f"v_mul_u32_u24 v{vt}, {RS}, v{vt3}")
            k.e(f"v_add_u32 v{vW[1]}, v{vt}, v{vt2}")
            sel = lambda s: (s, 0)
        else:
            vW = [va.get()]
            k.e(f"v_lshl_add_u32 v{vt3}, v{q}, 2, v{vt}")
            k.e(f"v_mul_u32_u24 v{vt}, {RS}, v{vt3}")
            k.e(f"v_add_u32 v{vW[0]}, v{vt}, v{vt2}")
            sel = lambda s: (0, s * 16 * RS)
        if WK == 2:
            k.e(f"s_mul_i32 s28, s{SKG}, {32*RS}")
            k.e(f"s_add_u32 s28, s28, {XB:#x}")
        else:
            k.e(f"s_mov_b32 s28, {XB:#x}")
        for r in vW:
            k.e(f"v_add_u32 v{r}, s28, v{r}")
        for ks in range(nks):
            for t in range(TN):
                for s in range(2):
                    i, imm = sel(s)
                    Wrd[(ks, t, s)] = (vW[i], imm + ks * 32 * RS + 32 * t)
    addr_regs = vX + vW
    hook_stores = 0
    if pre_hook:
        pre_hook(k, va, "load")
    for st in range(min(NS, nst)):
        for g in dma_ops(st):
            k.L.extend(g)
    if pre_hook:
        hook_stores = pre_hook(k, va, "compute", nmin * min(NS, nst) + (1 if False else 0))
    acc = va.get(TM * TN * 4, 4)
    def accr(mi, ti): return acc + (mi * TN + ti) * 4
    outerW = TN > TM
    NO, NI = (TN, TM) if outerW else (TM, TN)
    RO = (LA + NI - 1) // NI + 1
    while (NO * nks * NS) % RO: RO += 1
    oring = va.get(RO * 4, 4)
    NIS = 2 if (nks * NS) % 2 == 0 else 3
    iring = va.get(NIS * NI * 4, 4)
    LB = max(NI + LA - 4, 2)
    slots = []
    for st in range(nst):
        for ks in range(nks):
            for o in range(NO):
                for i in range(NI):
                    slots.append((st, ks, o, i))
    per_stage = nks * NO * NI
    def reads_for(kind, ks, idx, reg):
        isW = (kind == "o") == outerW
        if isW:
            out = []
            for s in range(2):
                v, imm = Wrd[(ks, idx, s)]
                out.append(f"  ds_read_b64_tr_b16 {vr(reg+2*s,2)}, v{v} offset:{imm}")
            return out
        return [f"  ds_read_b128 {vr(reg,4)}, v{vX[ks]} offset:{idx*2048}"]
    frags = []
    ocnt = 0; icnt = 0
    fmap = {}
    for st in range(nst):
        for ks in range(nks):
            base = (st * nks + ks) * NO * NI
            for i in range(NI):
                f = dict(kind="i", st=st, ks=ks, idx=i, first=base + i, last=base + (NO - 1) * NI + i,
                         reg=iring + ((icnt % NIS) * NI + i) * 4)
                frags.append(f); fmap[("i", st, ks, i)] = f
            icnt += 1
            for o in range(NO):
                f = dict(kind="o", st=st, ks=ks, idx=o, first=base + o * NI, last=base + o * NI + NI - 1,
                         reg=oring + (ocnt % RO) * 4)
                ocnt += 1
                frags.append(f); fmap[("o", st, ks, o)] = f
    lastuse = {}
    for f in sorted(frags, key=lambda f: f["first"]):
        p = f["first"] - LA
        if f["kind"] == "i":
            p = f["first"] - NO * NI + 1 + f["idx"] * max(1, (NO * NI - LA) // NI)
            p = min(p, f["first"] - LA)
        p = max(p, lastuse.get(f["reg"], -1) + 1)
        bar = f["st"] * per_stage - LB if f["st"] > 0 else 0
        p = max(p, bar, 0)
        f["pos"] = p
        lastuse[f["reg"]] = f["last"]
    bypos = {}
    for f in frags:
        bypos.setdefault(f["pos"], []).append(f)
    for p in bypos:
        bypos[p].sort(key=lambda f: f["first"])
    def body(trout, epi):
        epochs = []
        cur = []
        inflight = min(NS, nst) - 1
        cur.append(f"  s_waitcnt vmcnt({nmin*inflight + hook_stores})")
        cur.append("  s_barrier")
        stamp(cur, 1)
        if pre_hook:
            sv = k.L; k.L = cur
            pre_hook(k, va, "post")
            k.L = sv
        issued = 0; done = 0
        pend_dma = []
        started = set()
        for u, (st, ks, o, i) in enumerate(slots):
            nxt = st + 1
            if nxt < nst and u == nxt * per_stage - LB:
                epochs.append(cur); cur = []
                infl = max(0, min(NS - 2, nst - 1 - nxt))
                cur.append(f"  s_waitcnt vmcnt({nmin*infl}) lgkmcnt(0)")
                done = issued
                cur.append("  s_barrier")
                stamp(cur, None)
                sl = nxt % NS
                delta = SB if sl != 0 else -(NS - 1) * SB
                for r in addr_regs:
                    if delta > 0:
                        cur.append(f"  v_add_u32 v{r}, {delta:#x}, v{r}")
                    else:
                        cur.append(f"  v_subrev_u32 v{r}, {-delta:#x}, v{r}")
                if st + NS < nst:
                    pend_dma = dma_ops(st % NS)
            for f in bypos.get(u, []):
                for ins in reads_for(f["kind"], f["ks"], f["idx"], f["reg"]):
                    cur.append(ins); issued += 1
                f["seq"] = issued
            fo = fmap[("o", st, ks, o)]; fi = fmap[("i", st, ks, i)]
            need = max(fo["seq"], fi["seq"])
            if need > done:
                n = min(issued - need, 15)
                cur.append(f"  s_waitcnt lgkmcnt({n})")
                done = issued - n
            fw, fx = (fo, fi) if outerW else (fi, fo)
            mi, ti = (i, o) if outerW else (o, i)
            a = accr(mi, ti)
            c = vr(a, 4) if (mi, ti) in started else "0"
            started.add((mi, ti))
            if trout:
                cur.append(f"  v_mfma_f32_16x16x32_bf16 {vr(a,4)}, {vr(fx['reg'],4)}, {vr(fw['reg'],4)}, {c}")
            else:
                cur.append(f"  v_mfma_f32_16x16x32_bf16 {vr(a,4)}, {vr(fw['reg'],4)}, {vr(fx['reg'],4)}, {c}")
            if pend_dma:
                cur.extend(pend_dma.pop(0))
        assert not pend_dma
        epochs.append(cur)
        if loop:
            compress_loop(k, epochs, NS, 33)
        else:
            for ep in epochs: k.L.extend(ep)
        k.e("s_nop 15")
        stamp(k.L, 2)
        keep = list(range(TM))
        env = dict(k=k, va=va, vl=vl, q=q, vt=vt, vt2=vt2, vt3=vt3, accr=accr, TM=TM, TN=TN, SWM=SWM, SWN=SWN, SKG=SKG)
        if WK == 2:
            H = TM // 2
            k.e("s_barrier")
            RB = H * TN * 1024
            assert 8 * RB <= lds, (8 * RB, lds)
            k.e(f"s_mul_i32 s28, s20, {RB}")
            k.e(f"v_lshlrev_b32 v{vt}, 4, v{vl}")
            k.e(f"v_add_u32 v{vt2}, s28, v{vt}")
            k.e(f"s_xor_b32 s28, s20, 4")
            k.e(f"s_mul_i32 s28, s28, {RB}")
            k.e(f"v_add_u32 v{vt3}, s28, v{vt}")
            l1 = k.newlab("kg1"); l2 = k.newlab("kgj")
            tmp = oring
            ntmp = (RO * 4 + NIS * NI * 4) // 4
            assert iring == oring + RO * 4
            for kg in range(2):
                if kg == 0:
                    k.e(f"s_cmp_eq_u32 s{SKG}, 0")
                    k.e(f"s_cbranch_scc0 {l1}")
                else:
                    k.lab(l1)
                send = range(H, TM) if kg == 0 else range(0, H)
                kp = range(0, H) if kg == 0 else range(H, TM)
                n = 0
                for mi in send:
                    for ti in range(TN):
                        k.e(f"ds_write_b128 v{vt2}, {vr(accr(mi,ti),4)} offset:{n*1024}")
                        n += 1
                k.e("s_waitcnt lgkmcnt(0)")
                k.e("s_barrier")
                lst = [(mi, ti) for mi in kp for ti in range(TN)]
                for b in range(0, len(lst), ntmp):
                    blk = lst[b: b + ntmp]
                    for j, (mi, ti) in enumerate(blk):
                        k.e(f"ds_read_b128 {vr(tmp+4*j,4)}, v{vt3} offset:{(b+j)*1024}")
                    for j, (mi, ti) in enumerate(blk):
                        k.e(f"s_waitcnt lgkmcnt({min(len(blk)-1-j,15)})")
                        for r in range(4):
                            k.e(f"v_add_f32 v{accr(mi,ti)+r}, v{accr(mi,ti)+r}, v{tmp+4*j+r}")
                epi(env, list(kp))
                if kg == 0:
                    k.e(f"s_branch {lend}_d")
        else:
            epi(env, keep)
    if epi_alt is None:
        body(False, epi)
    else:
        lalt = k.newlab("alt")
        k.e("s_cmp_eq_u32 s27, 0")
        k.e(f"s_cbranch_scc0 {lalt}")
        body(False, epi)
        k.e(f"s_branch {lend}_d")
        k.lab(lalt)
        body(True, epi_alt)
    k.lab(lend + "_d")
    if dbg:
        k.e("s_waitcnt vmcnt(0)")
        stamp(k.L, 3)
        k.e("s_memrealtime s[54:55]")
        k.e("s_waitcnt lgkmcnt(0)")
        k.e(f"v_writelane_b32 v{vst}, s54, 63")
        k.e("s_lshl_b32 s46, s2, 3")
        k.e("s_add_u32 s46, s46, s20")
        k.e("s_lshl_b32 s46, s46, 9")
        mk_srd(k, 16, 40, off_sgpr=46, off_imm=DBG_OFF, size=512)
        k.e(f"v_lshlrev_b32 v{vt}, 2, v{vl}")
        k.e(f"buffer_store_dword v{vst}, v{vt}, s[16:19], 0 offen")
    k.lab(lend)
    k.e("s_endpgm")
    return k, lds
```

```python
from gen_common import *
from gen_gemm import gen_gemm

def k1_map(k):
    k.e(f"s_load_dwordx2 s[34:35], s[0:1], {KA['ckv']}")
    k.e(f"s_load_dwordx4 s[36:39], s[0:1], {KA['wuk']}")
    k.e(f"s_load_dwordx2 s[40:41], s[0:1], {KA['ws']}")
    k.e(f"s_load_dwordx2 s[42:43], s[0:1], {KA['x']}")
    k.e(f"s_load_dwordx2 s[56:57], s[0:1], {KA['wq']}")
    k.uses(58)
    k.e("s_and_b32 s44, s2, 7")
    k.e("s_lshr_b32 s45, s2, 3")
    k.e("s_and_b32 s46, s45, 3")
    k.e("s_lshl_b32 s44, s44, 2")
    k.e("s_add_u32 s44, s44, s46")
    k.e("s_lshr_b32 s45, s45, 2")
    k.e("s_waitcnt lgkmcnt(0)")
    k.e(f"s_mul_i32 s46, s45, {256*1024}")
    k.e(f"s_sub_u32 s47, {2048*1024}, s46")
    mk_srd(k, 4, 34, off_sgpr=46, size_sgpr=47)
    k.e("s_cmp_lt_u32 s44, 16")
    k.e("s_cselect_b32 s36, s36, s38")
    k.e("s_cselect_b32 s37, s37, s39")
    k.e("s_cselect_b32 s27, 0, 1")
    k.e(f"s_cselect_b32 s26, 0, {WS['v']-WS['k']:#x}")
    k.e(f"s_add_u32 s26, s26, {WS['k']:#x}")
    k.e("s_and_b32 s44, s44, 15")
    k.e("s_lshl_b32 s46, s44, 9")
    k.e(f"s_sub_u32 s47, {512*8192}, s46")
    mk_srd(k, 8, 36, off_sgpr=46, size_sgpr=47)
    k.e(f"s_mul_i32 s47, s45, {256*8192}")
    k.e("s_add_u32 s46, s46, s47")
    k.e(f"s_lshl_b32 s47, s44, 20")
    k.e(f"s_lshl_b32 s48, s45, 9")
    k.e("s_add_u32 s47, s47, s48")
    k.e("s_cmp_eq_u32 s27, 0")
    k.e("s_cselect_b32 s46, s46, s47")
    k.e(f"s_sub_u32 s47, {SZ_KV}, s46")
    k.e("s_add_u32 s46, s46, s26")
    mk_srd(k, 12, 40, off_sgpr=46, size_sgpr=47)

PF = "p" in __import__("os").environ.get("VAR", "ap")
def k1_hook(k, va, phase, ndma=0):
    if phase == "post":
        if not PF: return 0
        st = k1_hook.st
        if "pf" not in st:
            st["pf"] = va.get(4, 4)
        k.e("s_lshl_b32 s44, s2, 3")
        k.e("s_add_u32 s44, s44, s20")
        k.e("s_mul_i32 s44, s44, 3072")
        k.e(f"v_and_b32 v{st['vo']}, 63, v0")
        k.e(f"v_lshlrev_b32 v{st['vo']}, 4, v{st['vo']}")
        mk_srd(k, 16, 56, size=576 * 8192)
        for j in range(3):
            k.e(f"buffer_load_dwordx4 {vr(st['pf'],4)}, v{st['vo']}, s[16:19], s44 offen offset:{1024*j}")
        return 0
    if phase == "load":
        st = {}
        k1_hook.st = st
        k.e("s_lshl_b32 s44, s2, 3")
        k.e("s_add_u32 s44, s44, s20")
        k.e("s_mul_i32 s44, s44, 1152")
        mk_srd(k, 16, 42, off_sgpr=44, size=1152)
        st["vo"] = va.get(); st["raw"] = va.get(6, 2)
        k.e(f"v_and_b32 v{st['vo']}, 63, v0")
        k.e(f"v_lshlrev_b32 v{st['vo']}, 3, v{st['vo']}")
        k.e(f"v_cmp_gt_u32 vcc, 384, v{st['vo']}")
        k.e("s_mov_b64 s[46:47], vcc")
        k.e("s_mov_b64 exec, vcc")
        for i in range(3):
            k.e(f"buffer_load_dwordx2 {vr(st['raw']+2*i,2)}, v{st['vo']}, s[16:19], 0 offen offset:{384*i}")
        k.e("s_mov_b64 exec, -1")
        return 0
    st = k1_hook.st
    save = va.n
    X = [va.get() for _ in range(12)]
    k.e(f"s_waitcnt vmcnt({ndma})")
    k.e("s_mov_b64 exec, s[46:47]")
    for i in range(6):
        k.e(f"v_lshlrev_b32 v{X[2*i]}, 16, v{st['raw']+i}")
        k.e(f"v_and_b32 v{X[2*i+1]}, 0xffff0000, v{st['raw']+i}")
    layernorm12(k, X, va, 46)
    for i in range(6):
        k.e(f"v_cvt_pk_bf16_f32 v{st['raw']+i}, v{X[2*i]}, v{X[2*i+1]}")
    mk_srd(k, 16, 40, off_sgpr=44, off_imm=WS['xn'], size=1152) if WS['xn'] else mk_srd(k, 16, 40, off_sgpr=44, size=1152)
    for i in range(3):
        k.e(f"buffer_store_dwordx2 {vr(st['raw']+2*i,2)}, v{st['vo']}, s[16:19], 0 offen offset:{384*i}")
    k.e("s_mov_b64 exec, -1")
    va.n = save
    return 3

def epi_kv(env, keep):
    k = env["k"]; vl = env["vl"]; q = env["q"]; vt = env["vt"]; vt2 = env["vt2"]; accr = env["accr"]
    TM, TN = env["TM"], env["TN"]
    k.e(f"v_and_b32 v{vt}, 15, v{vl}")
    k.e(f"v_lshlrev_b32 v{vt}, 13, v{vt}")
    k.e(f"v_lshl_add_u32 v{vt}, v{q}, 4, v{vt}")
    k.e(f"s_mul_i32 s28, s{env['SWM']}, {TM*16*8192}")
    k.e(f"s_mul_i32 s29, s{env['SWN']}, {TN*32}")
    k.e("s_add_u32 s28, s28, s29")
    k.e(f"v_add_u32 v{vt}, s28, v{vt}")
    for mi in keep:
        k.e(f"s_mov_b32 s28, {mi*16*8192:#x}")
        for pt in range(TN // 2):
            a = accr(mi, 2 * pt); b = accr(mi, 2 * pt + 1)
            k.e(f"v_cvt_pk_bf16_f32 v{a}, v{a}, v{a+1}")
            k.e(f"v_cvt_pk_bf16_f32 v{a+1}, v{a+2}, v{a+3}")
            k.e(f"v_cvt_pk_bf16_f32 v{a+2}, v{b}, v{b+1}")
            k.e(f"v_cvt_pk_bf16_f32 v{a+3}, v{b+2}, v{b+3}")
            k.e(f"buffer_store_dwordx4 {vr(a,4)}, v{vt}, s[12:15], s28 offen offset:{64*pt}")

def epi_vt(env, keep):
    k = env["k"]; vl = env["vl"]; q = env["q"]; vt = env["vt"]; accr = env["accr"]
    TM, TN = env["TM"], env["TN"]
    k.e(f"v_and_b32 v{vt}, 15, v{vl}")
    k.e(f"v_lshlrev_b32 v{vt}, 12, v{vt}")
    k.e(f"v_lshl_add_u32 v{vt}, v{q}, 4, v{vt}")
    k.e(f"s_mul_i32 s28, s{env['SWN']}, {TN*16*4096}")
    k.e(f"s_mul_i32 s29, s{env['SWM']}, {TM*32}")
    k.e("s_add_u32 s28, s28, s29")
    k.e(f"v_add_u32 v{vt}, s28, v{vt}")
    for ti in range(TN):
        k.e(f"s_mov_b32 s28, {ti*16*4096:#x}")
        for pm in range(TM // 2):
            a = accr(2 * pm, ti); b = accr(2 * pm + 1, ti)
            k.e(f"v_cvt_pk_bf16_f32 v{a}, v{a}, v{a+1}")
            k.e(f"v_cvt_pk_bf16_f32 v{a+1}, v{a+2}, v{a+3}")
            k.e(f"v_cvt_pk_bf16_f32 v{a+2}, v{b}, v{b+1}")
            k.e(f"v_cvt_pk_bf16_f32 v{a+3}, v{b+2}, v{b+3}")
            k.e(f"buffer_store_dwordx4 {vr(a,4)}, v{vt}, s[12:15], s28 offen offset:{64*pm}")

def mk_splitk_map(xname, ldx, wname, ksl, pname):
    def f(k):
        k.e(f"s_load_dwordx2 s[36:37], s[0:1], {KA[wname]}")
        k.e(f"s_load_dwordx2 s[40:41], s[0:1], {KA['ws']}")
        k.e("s_and_b32 s44, s2, 7")
        k.e("s_lshr_b32 s45, s2, 3")
        k.e("s_and_b32 s42, s45, 3")
        k.e("s_lshr_b32 s45, s45, 2")
        k.e("s_and_b32 s46, s44, 1")
        k.e("s_lshl_b32 s46, s46, 3")
        k.e("s_add_u32 s45, s45, s46")
        k.e("s_lshr_b32 s43, s44, 1")
        k.e("s_waitcnt lgkmcnt(0)")
        k.e(f"s_mul_i32 s46, s45, {128*ldx}")
        k.e(f"s_mul_i32 s47, s43, {ksl*2}")
        k.e("s_add_u32 s46, s46, s47")
        k.e(f"s_sub_u32 s47, {2048*ldx}, s46")
        mk_srd(k, 4, 40, off_sgpr=46, off_imm=WS[xname], size_sgpr=47)
        k.e(f"s_mul_i32 s46, s43, {ksl*1152}")
        k.e("s_mul_i32 s47, s42, 288")
        k.e("s_add_u32 s46, s46, s47")
        k.e(f"s_sub_u32 s47, {ksl*4*1152}, s46")
        mk_srd(k, 8, 36, off_sgpr=46, size_sgpr=47)
        k.e(f"s_mul_i32 s46, s43, {SZ_PART}")
        k.e(f"s_mul_i32 s47, s45, {128*2304}")
        k.e("s_add_u32 s46, s46, s47")
        k.e("s_mul_i32 s47, s42, 576")
        k.e("s_add_u32 s46, s46, s47")
        k.e(f"s_sub_u32 s47, {4*SZ_PART}, s46")
        mk_srd(k, 12, 40, off_sgpr=46, off_imm=WS[pname], size_sgpr=47)
    return f

def epi_part(env, keep):
    k = env["k"]; vl = env["vl"]; q = env["q"]; vt = env["vt"]; accr = env["accr"]
    TM, TN = env["TM"], env["TN"]
    k.e(f"v_and_b32 v{vt}, 15, v{vl}")
    k.e(f"v_mul_u32_u24 v{vt}, 2304, v{vt}")
    k.e(f"v_lshl_add_u32 v{vt}, v{q}, 4, v{vt}")
    k.e(f"s_mul_i32 s28, s{env['SWM']}, {TM*16*2304}")
    k.e(f"v_add_u32 v{vt}, s28, v{vt}")
    for mi in keep:
        k.e(f"s_mov_b32 s28, {mi*16*2304:#x}")
        for t in range(TN):
            k.e(f"buffer_store_dwordx4 {vr(accr(mi,t),4)}, v{vt}, s[12:15], s28 offen offset:{64*t}")

def k5_map(k):
    k.e(f"s_load_dwordx4 s[36:39], s[0:1], {KA['w1']}")
    k.e(f"s_load_dwordx2 s[40:41], s[0:1], {KA['ws']}")
    k.e("s_and_b32 s44, s2, 7")
    k.e("s_lshr_b32 s45, s2, 3")
    k.e("s_and_b32 s46, s45, 3")
    k.e("s_lshl_b32 s44, s44, 2")
    k.e("s_add_u32 s44, s44, s46")
    k.e("s_lshr_b32 s45, s45, 2")
    k.e("s_and_b32 s26, s44, 1")
    k.e("s_waitcnt lgkmcnt(0)")
    k.e(f"s_mul_i32 s46, s45, {256*1152}")
    k.e(f"s_sub_u32 s47, {2048*1152}, s46")
    mk_srd(k, 4, 40, off_sgpr=46, off_imm=WS['hn'], size_sgpr=47)
    k.e("s_mul_i32 s46, s44, 288")
    k.e(f"s_sub_u32 s47, {576*9216}, s46")
    mk_srd(k, 8, 36, off_sgpr=46, size_sgpr=47)
    k.e(f"s_sub_u32 s47, {4608*2}, s46")
    mk_srd(k, 16, 38, off_sgpr=46, size_sgpr=47)
    k.e("s_and_b32 s46, s46, 0xffffffc0")
    k.e(f"s_mul_i32 s47, s45, {256*9216}")
    k.e("s_add_u32 s46, s46, s47")
    k.e(f"s_sub_u32 s47, {SZ_ACT}, s46")
    mk_srd(k, 12, 40, off_sgpr=46, off_imm=WS['act'], size_sgpr=47)

def k5_hook(k, va, phase, ndma=0):
    if phase == "post": return 0
    if phase == "load":
        b = va.get(18, 2); t = va.get()
        k5_hook.b = b
        k.e(f"v_bfe_u32 v{t}, v0, 4, 2")
        k.e(f"v_lshlrev_b32 v{t}, 3, v{t}")
        for i in range(9):
            k.e(f"buffer_load_dwordx2 {vr(b+2*i,2)}, v{t}, s[16:19], 0 offen offset:{32*i}")
        return 0
    return 0

def epi_act(env, keep):
    k = env["k"]; vl = env["vl"]; q = env["q"]; vt = env["vt"]; vt2 = env["vt2"]; vt3 = env["vt3"]; accr = env["accr"]
    TM, TN = env["TM"], env["TN"]
    b = k5_hook.b
    k.e(f"v_and_b32 v{vt}, 15, v{vl}")
    k.e(f"v_mul_u32_u24 v{vt}, 9216, v{vt}")
    k.e(f"v_lshl_add_u32 v{vt}, v{q}, 4, v{vt}")
    k.e(f"s_mul_i32 s28, s{env['SWM']}, {TM*16*9216}")
    k.e(f"v_add_u32 v{vt}, s28, v{vt}")
    for t in range(TN):
        for h in range(2):
            k.e(f"v_lshlrev_b32 v{vt2}, 16, v{b+2*t+h}")
            k.e(f"v_and_b32 v{vt3}, 0xffff0000, v{b+2*t+h}")
            for mi in keep:
                a = accr(mi, t) + 2 * h
                k.e(f"v_add_f32 v{a}, v{a}, v{vt2}")
                k.e(f"v_add_f32 v{a+1}, v{a+1}, v{vt3}")
                k.e(f"v_max_f32 v{a}, 0, v{a}")
                k.e(f"v_max_f32 v{a+1}, 0, v{a+1}")
                k.e(f"v_mul_f32 v{a}, v{a}, v{a}")
                k.e(f"v_mul_f32 v{a+1}, v{a+1}, v{a+1}")
    lo = k.newlab("odd"); lj = k.newlab("join")
    k.e("s_cmp_eq_u32 s26, 0")
    k.e(f"s_cbranch_scc0 {lo}")
    for par in range(2):
        if par: k.lab(lo)
        for mi in keep:
            k.e(f"s_mov_b32 s28, {mi*16*9216:#x}")
            t = 0
            while t < TN:
                g = (t + par) >> 1; e = (t + par) & 1
                a = accr(mi, t)
                if e == 0 and t + 1 < TN:
                    bb = accr(mi, t + 1)
                    k.e(f"v_cvt_pk_bf16_f32 v{a}, v{a}, v{a+1}")
                    k.e(f"v_cvt_pk_bf16_f32 v{a+1}, v{a+2}, v{a+3}")
                    k.e(f"v_cvt_pk_bf16_f32 v{a+2}, v{bb}, v{bb+1}")
                    k.e(f"v_cvt_pk_bf16_f32 v{a+3}, v{bb+2}, v{bb+3}")
                    k.e(f"buffer_store_dwordx4 {vr(a,4)}, v{vt}, s[12:15], s28 offen offset:{64*g}")
                    t += 2
                else:
                    k.e(f"v_cvt_pk_bf16_f32 v{a}, v{a}, v{a+1}")
                    k.e(f"v_cvt_pk_bf16_f32 v{a+1}, v{a+2}, v{a+3}")
                    k.e(f"buffer_store_dwordx2 {vr(a,2)}, v{vt}, s[12:15], s28 offen offset:{64*g+8*e}")
                    t += 1
        if par == 0:
            k.e(f"s_branch {lj}")
    k.lab(lj)

def gen_reduce(name, S, pname, final):
    k = Kern(name); k.uses(48)
    lend = name + "_end"
    k.e("s_cmp_ge_u32 s2, 256")
    k.e(f"s_cbranch_scc1 {lend}")
    va = VAlloc(k, 1)
    vo = va.get(); vo2 = va.get(); vt = va.get()
    k.e(f"v_lshrrev_b32 v{vt}, 6, v0")
    k.e(f"s_load_dwordx2 s[40:41], s[0:1], {KA['ws']}")
    k.e(f"s_load_dwordx2 s[42:43], s[0:1], {KA['x']}")
    k.e(f"s_load_dwordx2 s[44:45], s[0:1], {KA['b2']}")
    k.e(f"s_load_dwordx2 s[36:37], s[0:1], {KA['out']}")
    k.e(f"v_readfirstlane_b32 s20, v{vt}")
    k.e("s_lshl_b32 s21, s2, 3")
    k.e("s_add_u32 s21, s21, s20")
    k.e("s_mul_i32 s22, s21, 1152")
    k.e("s_mul_i32 s23, s21, 2304")
    k.e(f"v_and_b32 v{vo}, 63, v0")
    k.e(f"v_lshlrev_b32 v{vo2}, 3, v{vo}")
    k.e(f"v_lshlrev_b32 v{vo}, 4, v{vo}")
    k.e(f"v_cmp_gt_u32 vcc, 384, v{vo2}")
    k.e("s_mov_b64 s[46:47], vcc")
    k.e("s_waitcnt lgkmcnt(0)")
    k.e(f"s_sub_u32 s24, {S*SZ_PART}, s23")
    mk_srd(k, 4, 40, off_sgpr=23, off_imm=WS[pname], size_sgpr=24)
    if final:
        mk_srd(k, 8, 40, off_sgpr=22, off_imm=WS['h'], size=1152)
        mk_srd(k, 12, 36, off_sgpr=22, size=1152)
        mk_srd(k, 16, 44, size=1152)
    else:
        mk_srd(k, 8, 42, off_sgpr=22, size=1152)
        mk_srd(k, 12, 40, off_sgpr=22, off_imm=WS['h'], size=1152)
        mk_srd(k, 16, 40, off_sgpr=22, off_imm=WS['hn'], size=1152)
    k.e("s_mov_b64 exec, s[46:47]")
    P = va.get(12 * S, 4)
    R = va.get(6, 2)
    B = va.get(6, 2)
    for s in range(S):
        k.e(f"s_mov_b32 s25, {s*SZ_PART:#x}")
        for i in range(3):
            k.e(f"buffer_load_dwordx4 {vr(P+12*s+4*i,4)}, v{vo}, s[4:7], s25 offen offset:{768*i}")
    for i in range(3):
        k.e(f"buffer_load_dwordx2 {vr(R+2*i,2)}, v{vo2}, s[8:11], 0 offen offset:{384*i}")
    if final:
        for i in range(3):
            k.e(f"buffer_load_dwordx2 {vr(B+2*i,2)}, v{vo2}, s[16:19], 0 offen offset:{384*i}")
    nrest = 3 + (3 if final else 0)
    for s in range(1, S):
        k.e(f"s_waitcnt vmcnt({nrest + 3*(S-1-s)})")
        for j in range(12):
            k.e(f"v_add_f32 v{P+j}, v{P+j}, v{P+12*s+j}")
    k.e("s_waitcnt vmcnt(0)")
    X = [P + j for j in range(12)]
    t0 = va.get(); t1 = va.get()
    for i in range(6):
        a, b = X[2 * i], X[2 * i + 1]
        bf16_round(k, a); bf16_round(k, b)
        if final:
            k.e(f"v_lshlrev_b32 v{t0}, 16, v{B+i}")
            k.e(f"v_and_b32 v{t1}, 0xffff0000, v{B+i}")
            k.e(f"v_add_f32 v{a}, v{a}, v{t0}")
            k.e(f"v_add_f32 v{b}, v{b}, v{t1}")
            bf16_round(k, a); bf16_round(k, b)
        k.e(f"v_lshlrev_b32 v{t0}, 16, v{R+i}")
        k.e(f"v_and_b32 v{t1}, 0xffff0000, v{R+i}")
        k.e(f"v_add_f32 v{a}, v{a}, v{t0}")
        k.e(f"v_add_f32 v{b}, v{b}, v{t1}")
        k.e(f"v_cvt_pk_bf16_f32 v{R+i}, v{a}, v{b}")
    for i in range(3):
        k.e(f"buffer_store_dwordx2 {vr(R+2*i,2)}, v{vo2}, s[12:15], 0 offen offset:{384*i}")
    if not final:
        for i in range(6):
            k.e(f"v_lshlrev_b32 v{X[2*i]}, 16, v{R+i}")
            k.e(f"v_and_b32 v{X[2*i+1]}, 0xffff0000, v{R+i}")
        layernorm12(k, X, va, 46)
        for i in range(6):
            k.e(f"v_cvt_pk_bf16_f32 v{B+i}, v{X[2*i]}, v{X[2*i+1]}")
        for i in range(3):
            k.e(f"buffer_store_dwordx2 {vr(B+2*i,2)}, v{vo2}, s[16:19], 0 offen offset:{384*i}")
    k.lab(lend)
    k.e("s_endpgm")
    return k, 0
```

```python
import sys, json
from gen_common import *
from gen_gemm import gen_gemm
from gen_kernels import *
try:
    from gen_attn import gen_attn
except ImportError:
    gen_attn = None

def build(opts):
    import os
    V = os.environ.get("VAR", "ap")
    ks = []
    k1, l1 = gen_gemm("kvproj_kernel", 256, 256, 2, 4, 1, 2, 8, 256, k1_map, "nat", epi_kv, 1024, 8192, pre_hook=k1_hook, epi_alt=epi_vt)
    ks.append((k1, l1, 256, 512))
    if gen_attn:
        k2, l2 = gen_attn("attn_kernel")
        ks.append((k2, l2, 256, 512))
    k3, l3 = gen_gemm("oproj_kernel", 128, 144, *((8, 1, 1) if "b" in V else (4, 1, 2)), (4 if "n" in V else 3), 16, 256, mk_splitk_map("ctx", 8192, "wo", 1024, "p1"), "s32", epi_part, 8192, 1152)
    ks.append((k3, l3, 256, 512))
    k4, l4 = gen_reduce("red1_kernel", 4, "p1", False)
    ks.append((k4, l4, 256, 512))
    k5, l5 = gen_gemm("ffn1_kernel", 256, 144, *((8, 1, 1) if "a" in V else (4, 1, 2)), 3, 9, 256, k5_map, "nat", epi_act, 1152, 9216, pre_hook=k5_hook)
    ks.append((k5, l5, 256, 512))
    k6, l6 = gen_gemm("ffn2_kernel", 128, 144, *((8, 1, 1) if "b" in V else (4, 1, 2)), (4 if "n" in V else 3), 18, 256, mk_splitk_map("act", 9216, "w2", 1152, "p2"), "s32", epi_part, 9216, 1152)
    ks.append((k6, l6, 256, 512))
    k7, l7 = gen_reduce("red2_kernel", 4, "p2", True)
    ks.append((k7, l7, 256, 512))
    return ks

def main():
    out = sys.argv[1] if len(sys.argv) > 1 else f"cdna_kernels/{NAME}.s"
    ks = build({})
    hdr = open(f"cdna_kernels/{NAME}.s.ref").read().split("\n")
    lines = [l for l in hdr if l.startswith(";") and "@launch" not in l and "Override launch" not in l and "grid=ceil" not in l]
    txt = "\n".join(lines[:16]) + "\n"
    for k, lds, g, b in ks:
        txt += f"; @launch kernel={k.name} grid=({g},1,1) block=({b},1,1) lds={lds}\n"
    txt += '.amdgcn_target "amdgcn-amd-amdhsa--gfx950"\n.text\n'
    for k, *_ in ks:
        txt += k.text()
    txt += '.section .rodata,"a"\n'
    for k, *_ in ks:
        txt += k.desc()
    import os, re
    sf = os.environ.get("STFLAG", "sc1")
    if sf:
        txt = re.sub(r"(buffer_store_dwordx[24] .*offen(?: offset:\d+)?)\n", lambda m: m.group(1) + " " + sf + "\n", txt)
    open(out, "w").write(txt)
    lay = {"xn": (WS["xn"], 2048, 576, "nat"), "k": (WS["k"], 2048, 4096, "s32"), "v": (WS["v"], 4096, 2048, "vt"),
           "ctx": (WS["ctx"], 2048, 4096, "s32"), "h": (WS["h"], 2048, 576, "nat"), "hn": (WS["hn"], 2048, 576, "nat"),
           "act": (WS["act"], 2048, 4608, "s32")}
    json.dump(lay, open("layout.json", "w"))
    for k, lds, g, b in ks:
        print(k.name, "vgpr", k.nv, "lds", lds, "instrs", len(k.L))
main()
```

```python
from gen_common import *
import os
GDBG = os.environ.get("GEMM_DBG", "")
DBG_OFF = 200 * 1024 * 1024

def compress_loop(k, epochs, period, scount):
    n = len(epochs)
    best = (0, 0)
    for st in range(n):
        reps = 1
        while st + (reps + 1) * period <= n and \
                epochs[st + reps * period: st + (reps + 1) * period] == epochs[st: st + period]:
            reps += 1
        if reps > best[0]:
            best = (reps, st)
    reps, st = best
    if reps < 2:
        for ep in epochs:
            k.L.extend(ep)
        return
    for ep in epochs[:st]:
        k.L.extend(ep)
    lab = k.newlab("loop")
    k.e(f"s_mov_b32 s{scount}, {reps}")
    k.lab(lab)
    for ep in epochs[st: st + period]:
        k.L.extend(ep)
    k.e(f"s_sub_u32 s{scount}, s{scount}, 1")
    k.e(f"s_cmp_lg_u32 s{scount}, 0")
    k.e(f"s_cbranch_scc1 {lab}")
    for ep in epochs[st + reps * period:]:
        k.L.extend(ep)


def gen_gemm(name, BM, BN, WM, WN, WK, NS, nst, nwg, mapfn, xperm, epi, ldx, ldw, pre_hook=None, LA=8, loop=True, epi_alt=None, DSP=1, prio=0):
    assert WM * WN * WK == 8
    k = Kern(name)
    k.uses(52)
    TM = BM // WM // 16
    TN = BN // WN // 16
    XB = BM * 128
    WB = 64 * BN * 2
    SB = XB + WB
    nA = BM // 8; nB = BN // 8
    T = nA + nB
    nmin = T // 8; nextra = T % 8
    NSX, NSW = NS if isinstance(NS, tuple) else (NS, NS)
    import math
    PER = NSX * NSW // math.gcd(NSX, NSW)
    WOFF = NSX * XB
    lds = NSX * XB + NSW * WB
    k.e(f"s_cmp_ge_u32 s2, {nwg}")
    lend = name + "_end"
    k.e(f"s_cbranch_scc1 {lend}")
    va = VAlloc(k, 1)
    vl = va.get(); vt = va.get(); vt2 = va.get(); vt3 = va.get()
    dbg = (GDBG == name)
    vst = va.get() if dbg else None
    def stamp(out, idx):
        if not dbg: return
        out.append("  s_memtime s[50:51]")
        out.append("  s_waitcnt lgkmcnt(0)")
        if idx is None:
            out.append("  s_add_u32 s52, s52, 1")
            out.append("  s_mov_b32 m0, s52")
            out.append("  s_nop 0")
            out.append(f"  v_writelane_b32 v{vst}, s50, m0")
        else:
            out.append(f"  v_writelane_b32 v{vst}, s50, {idx}")
    if dbg:
        k.uses(56)
        k.e(f"v_mov_b32 v{vst}, 0")
        k.e("s_mov_b32 s52, 3")
        k.e("s_memrealtime s[54:55]")
        k.e("s_waitcnt lgkmcnt(0)")
        k.e(f"v_writelane_b32 v{vst}, s54, 62")
        stamp(k.L, 0)
    k.e(f"v_and_b32 v{vl}, 63, v0")
    k.e(f"v_lshrrev_b32 v{vt}, 6, v0")
    k.e("s_nop 0")
    k.e(f"v_readfirstlane_b32 s20, v{vt}")
    mapfn(k)
    k.e("s_lshl_b32 s21, s20, 10")
    k.e(f"s_and_b32 s22, s20, {WN-1}")
    k.e(f"s_lshr_b32 s23, s20, {WN.bit_length()-1}")
    k.e(f"s_and_b32 s24, s23, {WM-1}")
    k.e(f"s_lshr_b32 s25, s23, {WM.bit_length()-1}")
    SWN, SWM, SKG = 22, 24, 25
    assert nA % 8 == 0
    jA = nA // 8
    pieces = []
    jB = (nB + 7) // 8
    for j in range(jA): pieces.append(("A", j))
    for j in range(jB): pieces.append(("B", j))
    extra = None
    if nextra:
        extra = pieces.pop()
    assert len(pieces) == nmin
    voff = {}
    k.e(f"s_and_b32 s28, s20, 1")
    k.e(f"s_lshl_b32 s28, s28, 2")
    k.e(f"v_lshrrev_b32 v{vt}, 4, v{vl}")
    k.e(f"v_add_u32 v{vt}, s28, v{vt}")
    k.e(f"v_xor_b32 v{vt}, v{vt}, v{vl}")
    k.e(f"v_and_b32 v{vt}, 7, v{vt}")
    k.e(f"v_lshlrev_b32 v{vt}, 4, v{vt}")
    k.e(f"v_lshrrev_b32 v{vt2}, 3, v{vl}")
    k.e(f"s_lshl_b32 s28, s20, 3")
    k.e(f"v_add_u32 v{vt2}, s28, v{vt2}")
    k.e(f"s_mov_b32 s28, {ldx}")
    k.e(f"v_mul_lo_u32 v{vt2}, v{vt2}, s28")
    for j in range(jA):
        r = va.get(); voff[("A", j)] = r
        if j == 0:
            k.e(f"v_add_u32 v{r}, v{vt2}, v{vt}")
        else:
            k.e(f"v_add_u32 v{r}, {64*j*ldx:#x}, v{voff[('A',0)]}")
    k.e(f"s_mov_b32 s29, {ldw}")
    if BN == 256:
        k.e(f"v_lshrrev_b32 v{vt2}, 5, v{vl}")
        k.e(f"s_lshl_b32 s28, s20, 1")
        k.e(f"v_add_u32 v{vt2}, s28, v{vt2}")
        k.e(f"v_and_b32 v{vt}, 3, v{vt2}")
        k.e(f"v_lshrrev_b32 v{vt3}, 3, v{vt2}")
        k.e(f"v_lshl_or_b32 v{vt}, v{vt3}, 2, v{vt}")
        k.e(f"v_lshlrev_b32 v{vt}, 1, v{vt}")
        k.e(f"v_xor_b32 v{vt}, v{vt}, v{vl}")
        k.e(f"v_and_b32 v{vt}, 31, v{vt}")
        k.e(f"v_lshlrev_b32 v{vt}, 4, v{vt}")
        k.e(f"v_mul_lo_u32 v{vt2}, v{vt2}, s29")
        for j in range(jB):
            r = va.get(); voff[("B", j)] = r
            if j == 0:
                k.e(f"v_add_u32 v{r}, v{vt2}, v{vt}")
            else:
                k.e(f"v_add_u32 v{r}, {16*j*ldw:#x}, v{voff[('B',0)]}")
    else:
        CPR = BN // 8
        assert BN == 144
        for j in range(jB):
            r = va.get(); voff[("B", j)] = r
            k.e(f"s_lshl_b32 s28, s20, 6")
            k.e(f"s_add_u32 s28, s28, {512*j}")
            k.e(f"v_add_u32 v{vt}, s28, v{vl}")
            k.e(f"v_mul_u32_u24 v{vt2}, 3641, v{vt}")
            k.e(f"v_lshrrev_b32 v{vt2}, 16, v{vt2}")
            k.e(f"v_mul_u32_u24 v{vt3}, 18, v{vt2}")
            k.e(f"v_sub_u32 v{vt}, v{vt}, v{vt3}")
            k.e(f"v_lshlrev_b32 v{vt}, 4, v{vt}")
            if xperm == "nat":
                k.e(f"v_lshrrev_b32 v{vt3}, 1, v{vt2}")
                k.e(f"v_and_b32 v{vt3}, 4, v{vt3}")
                k.e(f"v_xor_b32 v{vt2}, v{vt2}, v{vt3}")
            k.e(f"v_mul_lo_u32 v{vt2}, v{vt2}, s29")
            k.e(f"v_add_u32 v{r}, v{vt2}, v{vt}")
    SOA, SOB = 30, 31
    k.e(f"s_mov_b32 s{SOA}, 0")
    k.e(f"s_mov_b32 s{SOB}, 0")

    def dma_ops(kind, stg):
        ops = []
        allp = [p for p in (([extra] if extra else []) + pieces) if p[0] == kind]
        for (kd, j) in allp:
            base = ((stg % NSX) * XB if kind == "A" else WOFF + (stg % NSW) * WB) + 8192 * j
            m0w = f"  s_add_u32 m0, s21, {base:#x}"
            srd = "s[4:7]" if kind == "A" else "s[8:11]"
            so = SOA if kind == "A" else SOB
            ld = f"  buffer_load_dwordx4 v{voff[(kind,j)]}, {srd}, s{so} offen lds"
            if (kd, j) == extra:
                ops.append(([f"  s_cmp_lt_u32 s20, {nextra}", "  s_cbranch_scc0 1f", m0w, "  s_nop 0", ld, "1:"], None))
            else:
                ops.append(([m0w, "  s_nop 0", ld], (kind, stg)))
        inc = f"  s_add_u32 s{SOA}, s{SOA}, 128" if kind == "A" else f"  s_add_u32 s{SOB}, s{SOB}, {64*ldw:#x}"
        ops[-1] = (ops[-1][0] + [inc], ops[-1][1])
        return ops
    q = va.get()
    k.e(f"v_lshrrev_b32 v{q}, 4, v{vl}")
    nks = 2 // WK
    vX = [va.get() for _ in range(nks)]
    k.e(f"v_and_b32 v{vt}, 15, v{vl}")
    k.e(f"v_lshrrev_b32 v{vt2}, 1, v{vt}")
    k.e(f"v_xor_b32 v{vt2}, v{vt2}, v{q}")
    if WK == 2:
        k.e(f"s_lshl_b32 s28, s{SKG}, 2")
        k.e(f"v_xor_b32 v{vt2}, s28, v{vt2}")
    k.e(f"v_lshlrev_b32 v{vt2}, 4, v{vt2}")
    k.e(f"s_mul_i32 s28, s{SWM}, {TM*16*128}")
    k.e(f"v_lshl_add_u32 v{vt2}, v{vt}, 7, v{vt2}")
    k.e(f"v_add_u32 v{vX[0]}, s28, v{vt2}")
    if nks == 2:
        k.e(f"v_xor_b32 v{vX[1]}, 64, v{vX[0]}")
    k.e(f"v_bfe_u32 v{vt}, v{vl}, 2, 2")
    k.e(f"v_and_b32 v{vt2}, 3, v{vl}")
    k.e(f"v_lshlrev_b32 v{vt2}, 3, v{vt2}")
    Wrd = {}
    if BN == 256:
        assert WK == 1
        vW = [va.get() for _ in range(TN)]
        k.e(f"v_lshl_add_u32 v{vt3}, v{q}, 3, v{vt}")
        k.e(f"v_lshl_add_u32 v{vt2}, v{vt3}, 9, v{vt2}")
        k.e(f"v_and_b32 v{vt3}, 1, v{q}")
        k.e(f"v_lshl_or_b32 v{vt3}, v{vt3}, 2, v{vt}")
        k.e(f"s_lshl_b32 s28, s{SWN}, 2")
        k.e(f"v_xor_b32 v{vt3}, s28, v{vt3}")
        for ti in range(TN):
            k.e(f"v_xor_b32 v{vt}, {ti}, v{vt3}")
            k.e(f"v_lshl_add_u32 v{vt}, v{vt}, 5, v{vt2}")
            k.e(f"v_add_u32 v{vW[ti]}, {WOFF:#x}, v{vt}")
        for ks in range(2):
            for ti in range(TN):
                for s in range(2):
                    Wrd[(ks, ti, s)] = (vW[ti], ks * 32 * 512 + s * 4 * 512)
    else:
        assert WN == 1
        RS = BN * 2
        if xperm == "nat":
            vW = [va.get() for _ in range(2)]
            k.e(f"v_and_b32 v{vt3}, 1, v{q}")
            k.e(f"v_lshl_add_u32 v{vt3}, v{vt3}, 2, v{vt}")
            k.e(f"v_lshl_add_u32 v{vt3}, v{q}, 3, v{vt3}")
            k.e(f"v_mul_u32_u24 v{vt}, {RS}, v{vt3}")
            k.e(f"v_add_u32 v{vW[0]}, v{vt}, v{vt2}")
            k.e(f"v_xor_b32 v{vt3}, 4, v{vt3}")
            k.e(f"v_mul_u32_u24 v{vt}, {RS}, v{vt3}")
            k.e(f"v_add_u32 v{vW[1]}, v{vt}, v{vt2}")
            sel = lambda s: (s, 0)
        else:
            vW = [va.get()]
            k.e(f"v_lshl_add_u32 v{vt3}, v{q}, 2, v{vt}")
            k.e(f"v_mul_u32_u24 v{vt}, {RS}, v{vt3}")
            k.e(f"v_add_u32 v{vW[0]}, v{vt}, v{vt2}")
            sel = lambda s: (0, s * 16 * RS)
        if WK == 2:
            k.e(f"s_mul_i32 s28, s{SKG}, {32*RS}")
            k.e(f"s_add_u32 s28, s28, {WOFF:#x}")
        else:
            k.e(f"s_mov_b32 s28, {WOFF:#x}")
        for r in vW:
            k.e(f"v_add_u32 v{r}, s28, v{r}")
        for ks in range(nks):
            for t in range(TN):
                for s in range(2):
                    i, imm = sel(s)
                    Wrd[(ks, t, s)] = (vW[i], imm + ks * 32 * RS + 32 * t)
    addr_regs = vX + vW
    vmq0 = []
    if pre_hook:
        pre_hook(k, va, "load")
    for d in range(max(NSX, NSW)):
        for kind, ns in (("A", NSX), ("B", NSW)):
            if d < ns and d < nst:
                for g, tag in dma_ops(kind, d):
                    k.L.extend(g)
                    if tag: vmq0.append(tag)
    if pre_hook:
        n = pre_hook(k, va, "compute", len(vmq0))
        vmq0 += [("hook", 0)] * n
    acc = va.get(TM * TN * 4, 4)
    def accr(mi, ti): return acc + (mi * TN + ti) * 4
    outerW = TN > TM
    NO, NI = (TN, TM) if outerW else (TM, TN)
    RO = (LA + NI - 1) // NI + 1
    while (NO * nks * PER) % RO: RO += 1
    oring = va.get(RO * 4, 4)
    NIS = 2 if (nks * PER) % 2 == 0 else 3
    iring = va.get(NIS * NI * 4, 4)
    LB = max(NI + LA - 4, 2)
    slots = []
    for st in range(nst):
        for ks in range(nks):
            for o in range(NO):
                for i in range(NI):
                    slots.append((st, ks, o, i))
    per_stage = nks * NO * NI
    def reads_for(kind, ks, idx, reg):
        isW = (kind == "o") == outerW
        if isW:
            out = []
            for s in range(2):
                v, imm = Wrd[(ks, idx, s)]
                out.append(f"  ds_read_b64_tr_b16 {vr(reg+2*s,2)}, v{v} offset:{imm}")
            return out
        return [f"  ds_read_b128 {vr(reg,4)}, v{vX[ks]} offset:{idx*2048}"]
    frags = []
    ocnt = 0; icnt = 0
    fmap = {}
    for st in range(nst):
        for ks in range(nks):
            base = (st * nks + ks) * NO * NI
            for i in range(NI):
                f = dict(kind="i", st=st, ks=ks, idx=i, first=base + i, last=base + (NO - 1) * NI + i,
                         reg=iring + ((icnt % NIS) * NI + i) * 4)
                frags.append(f); fmap[("i", st, ks, i)] = f
            icnt += 1
            for o in range(NO):
                f = dict(kind="o", st=st, ks=ks, idx=o, first=base + o * NI, last=base + o * NI + NI - 1,
                         reg=oring + (ocnt % RO) * 4)
                ocnt += 1
                frags.append(f); fmap[("o", st, ks, o)] = f
    lastuse = {}
    for f in sorted(frags, key=lambda f: f["first"]):
        p = f["first"] - LA
        if f["kind"] == "i":
            p = f["first"] - NO * NI + 1 + f["idx"] * max(1, (NO * NI - LA) // NI)
            p = min(p, f["first"] - LA)
        p = max(p, lastuse.get(f["reg"], -1) + 1)
        bar = f["st"] * per_stage - LB if f["st"] > 0 else 0
        p = max(p, bar, 0)
        f["pos"] = p
        lastuse[f["reg"]] = f["last"]
    bypos = {}
    for f in frags:
        bypos.setdefault(f["pos"], []).append(f)
    for p in bypos:
        bypos[p].sort(key=lambda f: f["first"])
    def body(trout, epi):
        epochs = []
        cur = []
        vmq = list(vmq0)
        def vwait(stg):
            idx = max(i for i, t in enumerate(vmq) if t in (("A", stg), ("B", stg)))
            return len(vmq) - 1 - idx
        if prio: cur.append(f"  s_setprio {prio}")
        cur.append(f"  s_waitcnt vmcnt({vwait(0)})")
        cur.append("  s_barrier")
        stamp(cur, 1)
        if pre_hook:
            sv = k.L; k.L = cur
            pre_hook(k, va, "post")
            k.L = sv
        issued = 0; done = 0
        pend_dma = []
        dcnt = 0
        started = set()
        for u, (st, ks, o, i) in enumerate(slots):
            nxt = st + 1
            if nxt < nst and u == nxt * per_stage - LB:
                epochs.append(cur); cur = []
                cur.append(f"  s_waitcnt vmcnt({vwait(nxt)}) lgkmcnt(0)")
                done = issued
                cur.append("  s_barrier")
                stamp(cur, None)
                for regs_, ns, sz in ((vX, NSX, XB), (vW, NSW, WB)):
                    delta = sz if nxt % ns else -(ns - 1) * sz
                    for r in regs_:
                        if delta > 0:
                            cur.append(f"  v_add_u32 v{r}, {delta:#x}, v{r}")
                        else:
                            cur.append(f"  v_subrev_u32 v{r}, {-delta:#x}, v{r}")
                assert not pend_dma
                for kind, ns in (("A", NSX), ("B", NSW)):
                    if st + ns < nst:
                        for g, tag in dma_ops(kind, st + ns):
                            pend_dma.append(g)
                            if tag: vmq.append(tag)
                dcnt = 0
            for f in bypos.get(u, []):
                for ins in reads_for(f["kind"], f["ks"], f["idx"], f["reg"]):
                    cur.append(ins); issued += 1
                f["seq"] = issued
            fo = fmap[("o", st, ks, o)]; fi = fmap[("i", st, ks, i)]
            need = max(fo["seq"], fi["seq"])
            if need > done:
                n = min(issued - need, 15)
                cur.append(f"  s_waitcnt lgkmcnt({n})")
                done = issued - n
            fw, fx = (fo, fi) if outerW else (fi, fo)
            mi, ti = (i, o) if outerW else (o, i)
            a = accr(mi, ti)
            c = vr(a, 4) if (mi, ti) in started else "0"
            started.add((mi, ti))
            if trout:
                cur.append(f"  v_mfma_f32_16x16x32_bf16 {vr(a,4)}, {vr(fx['reg'],4)}, {vr(fw['reg'],4)}, {c}")
            else:
                cur.append(f"  v_mfma_f32_16x16x32_bf16 {vr(a,4)}, {vr(fw['reg'],4)}, {vr(fx['reg'],4)}, {c}")
            dcnt += 1
            if pend_dma and dcnt % DSP == 0:
                cur.extend(pend_dma.pop(0))
        assert not pend_dma
        epochs.append(cur)
        if loop:
            compress_loop(k, epochs, PER, 33)
        else:
            for ep in epochs: k.L.extend(ep)
        k.e("s_nop 15")
        stamp(k.L, 2)
        keep = list(range(TM))
        env = dict(k=k, va=va, vl=vl, q=q, vt=vt, vt2=vt2, vt3=vt3, accr=accr, TM=TM, TN=TN, SWM=SWM, SWN=SWN, SKG=SKG)
        if WK == 2:
            H = TM // 2
            k.e("s_barrier")
            RB = H * TN * 1024
            assert 8 * RB <= lds, (8 * RB, lds)
            k.e(f"s_mul_i32 s28, s20, {RB}")
            k.e(f"v_lshlrev_b32 v{vt}, 4, v{vl}")
            k.e(f"v_add_u32 v{vt2}, s28, v{vt}")
            k.e(f"s_xor_b32 s28, s20, 4")
            k.e(f"s_mul_i32 s28, s28, {RB}")
            k.e(f"v_add_u32 v{vt3}, s28, v{vt}")
            l1 = k.newlab("kg1"); l2 = k.newlab("kgj")
            tmp = oring
            ntmp = (RO * 4 + NIS * NI * 4) // 4
            assert iring == oring + RO * 4
            for kg in range(2):
                if kg == 0:
                    k.e(f"s_cmp_eq_u32 s{SKG}, 0")
                    k.e(f"s_cbranch_scc0 {l1}")
                else:
                    k.lab(l1)
                send = range(H, TM) if kg == 0 else range(0, H)
                kp = range(0, H) if kg == 0 else range(H, TM)
                n = 0
                for mi in send:
                    for ti in range(TN):
                        k.e(f"ds_write_b128 v{vt2}, {vr(accr(mi,ti),4)} offset:{n*1024}")
                        n += 1
                k.e("s_waitcnt lgkmcnt(0)")
                k.e("s_barrier")
                lst = [(mi, ti) for mi in kp for ti in range(TN)]
                for b in range(0, len(lst), ntmp):
                    blk = lst[b: b + ntmp]
                    for j, (mi, ti) in enumerate(blk):
                        k.e(f"ds_read_b128 {vr(tmp+4*j,4)}, v{vt3} offset:{(b+j)*1024}")
                    for j, (mi, ti) in enumerate(blk):
                        k.e(f"s_waitcnt lgkmcnt({min(len(blk)-1-j,15)})")
                        for r in range(4):
                            k.e(f"v_add_f32 v{accr(mi,ti)+r}, v{accr(mi,ti)+r}, v{tmp+4*j+r}")
                epi(env, list(kp))
                if kg == 0:
                    k.e(f"s_branch {lend}_d")
        else:
            epi(env, keep)
    if epi_alt is None:
        body(False, epi)
    else:
        lalt = k.newlab("alt")
        k.e("s_cmp_eq_u32 s27, 0")
        k.e(f"s_cbranch_scc0 {lalt}")
        body(False, epi)
        k.e(f"s_branch {lend}_d")
        k.lab(lalt)
        body(True, epi_alt)
    k.lab(lend + "_d")
    if dbg:
        k.e("s_waitcnt vmcnt(0)")
        stamp(k.L, 3)
        k.e("s_memrealtime s[54:55]")
        k.e("s_waitcnt lgkmcnt(0)")
        k.e(f"v_writelane_b32 v{vst}, s54, 63")
        k.e("s_lshl_b32 s46, s2, 3")
        k.e("s_add_u32 s46, s46, s20")
        k.e("s_lshl_b32 s46, s46, 9")
        mk_srd(k, 16, 40, off_sgpr=46, off_imm=DBG_OFF, size=512)
        k.e(f"v_lshlrev_b32 v{vt}, 2, v{vl}")
        k.e(f"buffer_store_dword v{vst}, v{vt}, s[16:19], 0 offen")
    k.lab(lend)
    k.e("s_endpgm")
    return k, lds
```

```python
from gen_common import *
from gen_gemm import gen_gemm

def k1_map(k):
    k.e(f"s_load_dwordx2 s[34:35], s[0:1], {KA['ckv']}")
    k.e(f"s_load_dwordx4 s[36:39], s[0:1], {KA['wuk']}")
    k.e(f"s_load_dwordx2 s[40:41], s[0:1], {KA['ws']}")
    k.e(f"s_load_dwordx2 s[42:43], s[0:1], {KA['x']}")
    k.e(f"s_load_dwordx2 s[56:57], s[0:1], {KA['wq']}")
    k.uses(58)
    k.e("s_and_b32 s44, s2, 7")
    k.e("s_lshr_b32 s45, s2, 3")
    k.e("s_and_b32 s46, s45, 3")
    k.e("s_lshl_b32 s44, s44, 2")
    k.e("s_add_u32 s44, s44, s46")
    k.e("s_lshr_b32 s45, s45, 2")
    k.e("s_waitcnt lgkmcnt(0)")
    k.e(f"s_mul_i32 s46, s45, {256*1024}")
    k.e(f"s_sub_u32 s47, {2048*1024}, s46")
    mk_srd(k, 4, 34, off_sgpr=46, size_sgpr=47)
    k.e("s_cmp_lt_u32 s44, 16")
    k.e("s_cselect_b32 s36, s36, s38")
    k.e("s_cselect_b32 s37, s37, s39")
    k.e("s_cselect_b32 s27, 0, 1")
    k.e(f"s_cselect_b32 s26, 0, {WS['v']-WS['k']:#x}")
    k.e(f"s_add_u32 s26, s26, {WS['k']:#x}")
    k.e("s_and_b32 s44, s44, 15")
    k.e("s_lshl_b32 s46, s44, 9")
    k.e(f"s_sub_u32 s47, {512*8192}, s46")
    mk_srd(k, 8, 36, off_sgpr=46, size_sgpr=47)
    k.e(f"s_mul_i32 s47, s45, {256*8192}")
    k.e("s_add_u32 s46, s46, s47")
    k.e(f"s_lshl_b32 s47, s44, 20")
    k.e(f"s_lshl_b32 s48, s45, 9")
    k.e("s_add_u32 s47, s47, s48")
    k.e("s_cmp_eq_u32 s27, 0")
    k.e("s_cselect_b32 s46, s46, s47")
    k.e(f"s_sub_u32 s47, {SZ_KV}, s46")
    k.e("s_add_u32 s46, s46, s26")
    mk_srd(k, 12, 40, off_sgpr=46, size_sgpr=47)

PF = "p" in __import__("os").environ.get("VAR", "ap")
def k1_hook(k, va, phase, ndma=0):
    if phase == "post":
        if not PF: return 0
        st = k1_hook.st
        if "pf" not in st:
            st["pf"] = va.get(4, 4)
        k.e("s_lshl_b32 s44, s2, 3")
        k.e("s_add_u32 s44, s44, s20")
        k.e("s_mul_i32 s44, s44, 3072")
        k.e(f"v_and_b32 v{st['vo']}, 63, v0")
        k.e(f"v_lshlrev_b32 v{st['vo']}, 4, v{st['vo']}")
        mk_srd(k, 16, 56, size=576 * 8192)
        for j in range(3):
            k.e(f"buffer_load_dwordx4 {vr(st['pf'],4)}, v{st['vo']}, s[16:19], s44 offen offset:{1024*j}")
        if "q" in __import__("os").environ.get("VAR", ""):
            k.e(f"s_load_dwordx4 s[36:39], s[0:1], {KA['wuk']}")
            k.e("s_lshl_b32 s44, s2, 3")
            k.e("s_add_u32 s44, s44, s20")
            k.e("s_mul_i32 s44, s44, 1536")
            k.e(f"s_add_u32 s44, s44, {128*8192}")
            k.e("s_waitcnt lgkmcnt(0)")
            for p in (36, 38):
                mk_srd(k, 16, p, size=512 * 8192)
                for j in range(2):
                    k.e(f"buffer_load_dwordx4 {vr(st['pf'],4)}, v{st['vo']}, s[16:19], s44 offen offset:{512*j}")
        return 0
    if phase == "load":
        st = {}
        k1_hook.st = st
        k.e("s_lshl_b32 s44, s2, 3")
        k.e("s_add_u32 s44, s44, s20")
        k.e("s_mul_i32 s44, s44, 1152")
        mk_srd(k, 16, 42, off_sgpr=44, size=1152)
        st["vo"] = va.get(); st["raw"] = va.get(6, 2)
        k.e(f"v_and_b32 v{st['vo']}, 63, v0")
        k.e(f"v_lshlrev_b32 v{st['vo']}, 3, v{st['vo']}")
        k.e(f"v_cmp_gt_u32 vcc, 384, v{st['vo']}")
        k.e("s_mov_b64 s[46:47], vcc")
        k.e("s_mov_b64 exec, vcc")
        for i in range(3):
            k.e(f"buffer_load_dwordx2 {vr(st['raw']+2*i,2)}, v{st['vo']}, s[16:19], 0 offen offset:{384*i}")
        k.e("s_mov_b64 exec, -1")
        return 0
    st = k1_hook.st
    save = va.n
    X = [va.get() for _ in range(12)]
    k.e(f"s_waitcnt vmcnt({ndma})")
    k.e("s_mov_b64 exec, s[46:47]")
    for i in range(6):
        k.e(f"v_lshlrev_b32 v{X[2*i]}, 16, v{st['raw']+i}")
        k.e(f"v_and_b32 v{X[2*i+1]}, 0xffff0000, v{st['raw']+i}")
    layernorm12(k, X, va, 46)
    for i in range(6):
        k.e(f"v_cvt_pk_bf16_f32 v{st['raw']+i}, v{X[2*i]}, v{X[2*i+1]}")
    mk_srd(k, 16, 40, off_sgpr=44, off_imm=WS['xn'], size=1152) if WS['xn'] else mk_srd(k, 16, 40, off_sgpr=44, size=1152)
    for i in range(3):
        k.e(f"buffer_store_dwordx2 {vr(st['raw']+2*i,2)}, v{st['vo']}, s[16:19], 0 offen offset:{384*i}")
    k.e("s_mov_b64 exec, -1")
    va.n = save
    return 3

def epi_kv(env, keep):
    k = env["k"]; vl = env["vl"]; q = env["q"]; vt = env["vt"]; vt2 = env["vt2"]; accr = env["accr"]
    TM, TN = env["TM"], env["TN"]
    k.e(f"v_and_b32 v{vt}, 15, v{vl}")
    k.e(f"v_lshlrev_b32 v{vt}, 13, v{vt}")
    k.e(f"v_lshl_add_u32 v{vt}, v{q}, 4, v{vt}")
    k.e(f"s_mul_i32 s28, s{env['SWM']}, {TM*16*8192}")
    k.e(f"s_mul_i32 s29, s{env['SWN']}, {TN*32}")
    k.e("s_add_u32 s28, s28, s29")
    k.e(f"v_add_u32 v{vt}, s28, v{vt}")
    for mi in keep:
        k.e(f"s_mov_b32 s28, {mi*16*8192:#x}")
        for pt in range(TN // 2):
            a = accr(mi, 2 * pt); b = accr(mi, 2 * pt + 1)
            k.e(f"v_cvt_pk_bf16_f32 v{a}, v{a}, v{a+1}")
            k.e(f"v_cvt_pk_bf16_f32 v{a+1}, v{a+2}, v{a+3}")
            k.e(f"v_cvt_pk_bf16_f32 v{a+2}, v{b}, v{b+1}")
            k.e(f"v_cvt_pk_bf16_f32 v{a+3}, v{b+2}, v{b+3}")
            k.e(f"buffer_store_dwordx4 {vr(a,4)}, v{vt}, s[12:15], s28 offen offset:{64*pt}")

def epi_vt(env, keep):
    k = env["k"]; vl = env["vl"]; q = env["q"]; vt = env["vt"]; accr = env["accr"]
    TM, TN = env["TM"], env["TN"]
    k.e(f"v_and_b32 v{vt}, 15, v{vl}")
    k.e(f"v_lshlrev_b32 v{vt}, 12, v{vt}")
    k.e(f"v_lshl_add_u32 v{vt}, v{q}, 4, v{vt}")
    k.e(f"s_mul_i32 s28, s{env['SWN']}, {TN*16*4096}")
    k.e(f"s_mul_i32 s29, s{env['SWM']}, {TM*32}")
    k.e("s_add_u32 s28, s28, s29")
    k.e(f"v_add_u32 v{vt}, s28, v{vt}")
    for ti in range(TN):
        k.e(f"s_mov_b32 s28, {ti*16*4096:#x}")
        for pm in range(TM // 2):
            a = accr(2 * pm, ti); b = accr(2 * pm + 1, ti)
            k.e(f"v_cvt_pk_bf16_f32 v{a}, v{a}, v{a+1}")
            k.e(f"v_cvt_pk_bf16_f32 v{a+1}, v{a+2}, v{a+3}")
            k.e(f"v_cvt_pk_bf16_f32 v{a+2}, v{b}, v{b+1}")
            k.e(f"v_cvt_pk_bf16_f32 v{a+3}, v{b+2}, v{b+3}")
            k.e(f"buffer_store_dwordx4 {vr(a,4)}, v{vt}, s[12:15], s28 offen offset:{64*pm}")

def mk_splitk_map(xname, ldx, wname, ksl, pname):
    def f(k):
        k.e(f"s_load_dwordx2 s[36:37], s[0:1], {KA[wname]}")
        k.e(f"s_load_dwordx2 s[40:41], s[0:1], {KA['ws']}")
        k.e("s_and_b32 s44, s2, 7")
        k.e("s_lshr_b32 s45, s2, 3")
        k.e("s_and_b32 s42, s45, 3")
        k.e("s_lshr_b32 s45, s45, 2")
        k.e("s_and_b32 s46, s44, 1")
        k.e("s_lshl_b32 s46, s46, 3")
        k.e("s_add_u32 s45, s45, s46")
        k.e("s_lshr_b32 s43, s44, 1")
        k.e("s_waitcnt lgkmcnt(0)")
        k.e(f"s_mul_i32 s46, s45, {128*ldx}")
        k.e(f"s_mul_i32 s47, s43, {ksl*2}")
        k.e("s_add_u32 s46, s46, s47")
        k.e(f"s_sub_u32 s47, {2048*ldx}, s46")
        mk_srd(k, 4, 40, off_sgpr=46, off_imm=WS[xname], size_sgpr=47)
        k.e(f"s_mul_i32 s46, s43, {ksl*1152}")
        k.e("s_mul_i32 s47, s42, 288")
        k.e("s_add_u32 s46, s46, s47")
        k.e(f"s_sub_u32 s47, {ksl*4*1152}, s46")
        mk_srd(k, 8, 36, off_sgpr=46, size_sgpr=47)
        k.e(f"s_mul_i32 s46, s43, {SZ_PART}")
        k.e(f"s_mul_i32 s47, s45, {128*2304}")
        k.e("s_add_u32 s46, s46, s47")
        k.e("s_mul_i32 s47, s42, 576")
        k.e("s_add_u32 s46, s46, s47")
        k.e(f"s_sub_u32 s47, {4*SZ_PART}, s46")
        mk_srd(k, 12, 40, off_sgpr=46, off_imm=WS[pname], size_sgpr=47)
    return f

def epi_part(env, keep):
    k = env["k"]; vl = env["vl"]; q = env["q"]; vt = env["vt"]; accr = env["accr"]
    TM, TN = env["TM"], env["TN"]
    k.e(f"v_and_b32 v{vt}, 15, v{vl}")
    k.e(f"v_mul_u32_u24 v{vt}, 2304, v{vt}")
    k.e(f"v_lshl_add_u32 v{vt}, v{q}, 4, v{vt}")
    k.e(f"s_mul_i32 s28, s{env['SWM']}, {TM*16*2304}")
    k.e(f"v_add_u32 v{vt}, s28, v{vt}")
    for mi in keep:
        k.e(f"s_mov_b32 s28, {mi*16*2304:#x}")
        for t in range(TN):
            k.e(f"buffer_store_dwordx4 {vr(accr(mi,t),4)}, v{vt}, s[12:15], s28 offen offset:{64*t}")

def k5_map(k):
    k.e(f"s_load_dwordx4 s[36:39], s[0:1], {KA['w1']}")
    k.e(f"s_load_dwordx2 s[40:41], s[0:1], {KA['ws']}")
    k.e("s_and_b32 s44, s2, 7")
    k.e("s_lshr_b32 s45, s2, 3")
    k.e("s_and_b32 s46, s45, 3")
    k.e("s_lshl_b32 s44, s44, 2")
    k.e("s_add_u32 s44, s44, s46")
    k.e("s_lshr_b32 s45, s45, 2")
    k.e("s_and_b32 s26, s44, 1")
    k.e("s_waitcnt lgkmcnt(0)")
    k.e(f"s_mul_i32 s46, s45, {256*1152}")
    k.e(f"s_sub_u32 s47, {2048*1152}, s46")
    mk_srd(k, 4, 40, off_sgpr=46, off_imm=WS['hn'], size_sgpr=47)
    k.e("s_mul_i32 s46, s44, 288")
    k.e(f"s_sub_u32 s47, {576*9216}, s46")
    mk_srd(k, 8, 36, off_sgpr=46, size_sgpr=47)
    k.e(f"s_sub_u32 s47, {4608*2}, s46")
    mk_srd(k, 16, 38, off_sgpr=46, size_sgpr=47)
    k.e("s_and_b32 s46, s46, 0xffffffc0")
    k.e(f"s_mul_i32 s47, s45, {256*9216}")
    k.e("s_add_u32 s46, s46, s47")
    k.e(f"s_sub_u32 s47, {SZ_ACT}, s46")
    mk_srd(k, 12, 40, off_sgpr=46, off_imm=WS['act'], size_sgpr=47)

def k5_hook(k, va, phase, ndma=0):
    if phase == "post": return 0
    if phase == "load":
        b = va.get(18, 2); t = va.get()
        k5_hook.b = b
        k.e(f"v_bfe_u32 v{t}, v0, 4, 2")
        k.e(f"v_lshlrev_b32 v{t}, 3, v{t}")
        for i in range(9):
            k.e(f"buffer_load_dwordx2 {vr(b+2*i,2)}, v{t}, s[16:19], 0 offen offset:{32*i}")
        return 0
    return 0

def epi_act(env, keep):
    k = env["k"]; vl = env["vl"]; q = env["q"]; vt = env["vt"]; vt2 = env["vt2"]; vt3 = env["vt3"]; accr = env["accr"]
    TM, TN = env["TM"], env["TN"]
    b = k5_hook.b
    k.e(f"v_and_b32 v{vt}, 15, v{vl}")
    k.e(f"v_mul_u32_u24 v{vt}, 9216, v{vt}")
    k.e(f"v_lshl_add_u32 v{vt}, v{q}, 4, v{vt}")
    k.e(f"s_mul_i32 s28, s{env['SWM']}, {TM*16*9216}")
    k.e(f"v_add_u32 v{vt}, s28, v{vt}")
    for t in range(TN):
        for h in range(2):
            k.e(f"v_lshlrev_b32 v{vt2}, 16, v{b+2*t+h}")
            k.e(f"v_and_b32 v{vt3}, 0xffff0000, v{b+2*t+h}")
            for mi in keep:
                a = accr(mi, t) + 2 * h
                k.e(f"v_add_f32 v{a}, v{a}, v{vt2}")
                k.e(f"v_add_f32 v{a+1}, v{a+1}, v{vt3}")
                k.e(f"v_max_f32 v{a}, 0, v{a}")
                k.e(f"v_max_f32 v{a+1}, 0, v{a+1}")
                k.e(f"v_mul_f32 v{a}, v{a}, v{a}")
                k.e(f"v_mul_f32 v{a+1}, v{a+1}, v{a+1}")
    lo = k.newlab("odd"); lj = k.newlab("join")
    k.e("s_cmp_eq_u32 s26, 0")
    k.e(f"s_cbranch_scc0 {lo}")
    for par in range(2):
        if par: k.lab(lo)
        for mi in keep:
            k.e(f"s_mov_b32 s28, {mi*16*9216:#x}")
            t = 0
            while t < TN:
                g = (t + par) >> 1; e = (t + par) & 1
                a = accr(mi, t)
                if e == 0 and t + 1 < TN:
                    bb = accr(mi, t + 1)
                    k.e(f"v_cvt_pk_bf16_f32 v{a}, v{a}, v{a+1}")
                    k.e(f"v_cvt_pk_bf16_f32 v{a+1}, v{a+2}, v{a+3}")
                    k.e(f"v_cvt_pk_bf16_f32 v{a+2}, v{bb}, v{bb+1}")
                    k.e(f"v_cvt_pk_bf16_f32 v{a+3}, v{bb+2}, v{bb+3}")
                    k.e(f"buffer_store_dwordx4 {vr(a,4)}, v{vt}, s[12:15], s28 offen offset:{64*g}")
                    t += 2
                else:
                    k.e(f"v_cvt_pk_bf16_f32 v{a}, v{a}, v{a+1}")
                    k.e(f"v_cvt_pk_bf16_f32 v{a+1}, v{a+2}, v{a+3}")
                    k.e(f"buffer_store_dwordx2 {vr(a,2)}, v{vt}, s[12:15], s28 offen offset:{64*g+8*e}")
                    t += 1
        if par == 0:
            k.e(f"s_branch {lj}")
    k.lab(lj)

def gen_reduce(name, S, pname, final):
    k = Kern(name); k.uses(48)
    lend = name + "_end"
    k.e("s_cmp_ge_u32 s2, 256")
    k.e(f"s_cbranch_scc1 {lend}")
    va = VAlloc(k, 1)
    vo = va.get(); vo2 = va.get(); vt = va.get()
    k.e(f"v_lshrrev_b32 v{vt}, 6, v0")
    k.e(f"s_load_dwordx2 s[40:41], s[0:1], {KA['ws']}")
    k.e(f"s_load_dwordx2 s[42:43], s[0:1], {KA['x']}")
    k.e(f"s_load_dwordx2 s[44:45], s[0:1], {KA['b2']}")
    k.e(f"s_load_dwordx2 s[36:37], s[0:1], {KA['out']}")
    k.e(f"v_readfirstlane_b32 s20, v{vt}")
    k.e("s_lshl_b32 s21, s2, 3")
    k.e("s_add_u32 s21, s21, s20")
    k.e("s_mul_i32 s22, s21, 1152")
    k.e("s_mul_i32 s23, s21, 2304")
    k.e(f"v_and_b32 v{vo}, 63, v0")
    k.e(f"v_lshlrev_b32 v{vo2}, 3, v{vo}")
    k.e(f"v_lshlrev_b32 v{vo}, 4, v{vo}")
    k.e(f"v_cmp_gt_u32 vcc, 384, v{vo2}")
    k.e("s_mov_b64 s[46:47], vcc")
    k.e("s_waitcnt lgkmcnt(0)")
    k.e(f"s_sub_u32 s24, {S*SZ_PART}, s23")
    mk_srd(k, 4, 40, off_sgpr=23, off_imm=WS[pname], size_sgpr=24)
    if final:
        mk_srd(k, 8, 40, off_sgpr=22, off_imm=WS['h'], size=1152)
        mk_srd(k, 12, 36, off_sgpr=22, size=1152)
        mk_srd(k, 16, 44, size=1152)
    else:
        mk_srd(k, 8, 42, off_sgpr=22, size=1152)
        mk_srd(k, 12, 40, off_sgpr=22, off_imm=WS['h'], size=1152)
        mk_srd(k, 16, 40, off_sgpr=22, off_imm=WS['hn'], size=1152)
    k.e("s_mov_b64 exec, s[46:47]")
    P = va.get(12 * S, 4)
    R = va.get(6, 2)
    B = va.get(6, 2)
    for s in range(S):
        k.e(f"s_mov_b32 s25, {s*SZ_PART:#x}")
        for i in range(3):
            k.e(f"buffer_load_dwordx4 {vr(P+12*s+4*i,4)}, v{vo}, s[4:7], s25 offen offset:{768*i}")
    for i in range(3):
        k.e(f"buffer_load_dwordx2 {vr(R+2*i,2)}, v{vo2}, s[8:11], 0 offen offset:{384*i}")
    if final:
        for i in range(3):
            k.e(f"buffer_load_dwordx2 {vr(B+2*i,2)}, v{vo2}, s[16:19], 0 offen offset:{384*i}")
    nrest = 3 + (3 if final else 0)
    for s in range(1, S):
        k.e(f"s_waitcnt vmcnt({nrest + 3*(S-1-s)})")
        for j in range(12):
            k.e(f"v_add_f32 v{P+j}, v{P+j}, v{P+12*s+j}")
    k.e("s_waitcnt vmcnt(0)")
    X = [P + j for j in range(12)]
    t0 = va.get(); t1 = va.get()
    for i in range(6):
        a, b = X[2 * i], X[2 * i + 1]
        bf16_round(k, a); bf16_round(k, b)
        if final:
            k.e(f"v_lshlrev_b32 v{t0}, 16, v{B+i}")
            k.e(f"v_and_b32 v{t1}, 0xffff0000, v{B+i}")
            k.e(f"v_add_f32 v{a}, v{a}, v{t0}")
            k.e(f"v_add_f32 v{b}, v{b}, v{t1}")
            bf16_round(k, a); bf16_round(k, b)
        k.e(f"v_lshlrev_b32 v{t0}, 16, v{R+i}")
        k.e(f"v_and_b32 v{t1}, 0xffff0000, v{R+i}")
        k.e(f"v_add_f32 v{a}, v{a}, v{t0}")
        k.e(f"v_add_f32 v{b}, v{b}, v{t1}")
        k.e(f"v_cvt_pk_bf16_f32 v{R+i}, v{a}, v{b}")
    for i in range(3):
        k.e(f"buffer_store_dwordx2 {vr(R+2*i,2)}, v{vo2}, s[12:15], 0 offen offset:{384*i}")
    if not final:
        for i in range(6):
            k.e(f"v_lshlrev_b32 v{X[2*i]}, 16, v{R+i}")
            k.e(f"v_and_b32 v{X[2*i+1]}, 0xffff0000, v{R+i}")
        layernorm12(k, X, va, 46)
        for i in range(6):
            k.e(f"v_cvt_pk_bf16_f32 v{B+i}, v{X[2*i]}, v{X[2*i+1]}")
        for i in range(3):
            k.e(f"buffer_store_dwordx2 {vr(B+2*i,2)}, v{vo2}, s[16:19], 0 offen offset:{384*i}")
    k.lab(lend)
    k.e("s_endpgm")
    return k, 0
```

```python
import sys, json
from gen_common import *
from gen_gemm import gen_gemm
from gen_kernels import *
try:
    from gen_attn import gen_attn
except ImportError:
    gen_attn = None

def build(opts):
    import os
    V = os.environ.get("VAR", "ap")
    ks = []
    k1, l1 = gen_gemm("kvproj_kernel", 256, 256, 2, 4, 1, ((2, 3) if "k" in V else 2), 8, 256, k1_map, "nat", epi_kv, 1024, 8192, pre_hook=k1_hook, epi_alt=epi_vt, DSP=(4 if "d" in V else 1))
    ks.append((k1, l1, 256, 512))
    if gen_attn:
        k2, l2 = gen_attn("attn_kernel")
        ks.append((k2, l2, 256, 512))
    k3, l3 = gen_gemm("oproj_kernel", 128, 144, *((8, 1, 1) if "b" in V else (4, 1, 2)), (4 if "n" in V else 3), 16, 256, mk_splitk_map("ctx", 8192, "wo", 1024, "p1"), "s32", epi_part, 8192, 1152, DSP=(2 if "d" in V else 1))
    ks.append((k3, l3, 256, 512))
    k4, l4 = gen_reduce("red1_kernel", 4, "p1", False)
    ks.append((k4, l4, 256, 512))
    k5, l5 = gen_gemm("ffn1_kernel", 256, 144, *((8, 1, 1) if "a" in V else (4, 1, 2)), 3, 9, 256, k5_map, "nat", epi_act, 1152, 9216, pre_hook=k5_hook, DSP=(3 if "d" in V else 1))
    ks.append((k5, l5, 256, 512))
    k6, l6 = gen_gemm("ffn2_kernel", 128, 144, *((8, 1, 1) if "b" in V else (4, 1, 2)), (4 if "n" in V else 3), 18, 256, mk_splitk_map("act", 9216, "w2", 1152, "p2"), "s32", epi_part, 9216, 1152, DSP=(2 if "d" in V else 1))
    ks.append((k6, l6, 256, 512))
    k7, l7 = gen_reduce("red2_kernel", 4, "p2", True)
    ks.append((k7, l7, 256, 512))
    return ks

def main():
    out = sys.argv[1] if len(sys.argv) > 1 else f"cdna_kernels/{NAME}.s"
    ks = build({})
    hdr = open(f"cdna_kernels/{NAME}.s.ref").read().split("\n")
    lines = [l for l in hdr if l.startswith(";") and "@launch" not in l and "Override launch" not in l and "grid=ceil" not in l]
    txt = "\n".join(lines[:16]) + "\n"
    for k, lds, g, b in ks:
        txt += f"; @launch kernel={k.name} grid=({g},1,1) block=({b},1,1) lds={lds}\n"
    txt += '.amdgcn_target "amdgcn-amd-amdhsa--gfx950"\n.text\n'
    for k, *_ in ks:
        txt += k.text()
    txt += '.section .rodata,"a"\n'
    for k, *_ in ks:
        txt += k.desc()
    import os, re
    sf = os.environ.get("STFLAG", "sc1")
    if sf:
        txt = re.sub(r"(buffer_store_dwordx[24] .*offen(?: offset:\d+)?)\n", lambda m: m.group(1) + " " + sf + "\n", txt)
    open(out, "w").write(txt)
    lay = {"xn": (WS["xn"], 2048, 576, "nat"), "k": (WS["k"], 2048, 4096, "s32"), "v": (WS["v"], 4096, 2048, "vt"),
           "ctx": (WS["ctx"], 2048, 4096, "s32"), "h": (WS["h"], 2048, 576, "nat"), "hn": (WS["hn"], 2048, 576, "nat"),
           "act": (WS["act"], 2048, 4608, "s32")}
    json.dump(lay, open("layout.json", "w"))
    for k, lds, g, b in ks:
        print(k.name, "vgpr", k.nv, "lds", lds, "instrs", len(k.L))
main()
```

```python
from gen_common import *
from gen_gemm import gen_gemm

def k1_map(k):
    k.e(f"s_load_dwordx2 s[34:35], s[0:1], {KA['ckv']}")
    k.e(f"s_load_dwordx4 s[36:39], s[0:1], {KA['wuk']}")
    k.e(f"s_load_dwordx2 s[40:41], s[0:1], {KA['ws']}")
    k.e(f"s_load_dwordx2 s[42:43], s[0:1], {KA['x']}")
    k.e(f"s_load_dwordx2 s[56:57], s[0:1], {KA['wq']}")
    k.uses(58)
    k.e("s_and_b32 s44, s2, 7")
    k.e("s_lshr_b32 s45, s2, 3")
    k.e("s_and_b32 s46, s45, 3")
    k.e("s_lshl_b32 s44, s44, 2")
    k.e("s_add_u32 s44, s44, s46")
    k.e("s_lshr_b32 s45, s45, 2")
    k.e("s_waitcnt lgkmcnt(0)")
    k.e(f"s_mul_i32 s46, s45, {256*1024}")
    k.e(f"s_sub_u32 s47, {2048*1024}, s46")
    mk_srd(k, 4, 34, off_sgpr=46, size_sgpr=47)
    k.e("s_cmp_lt_u32 s44, 16")
    k.e("s_cselect_b32 s36, s36, s38")
    k.e("s_cselect_b32 s37, s37, s39")
    k.e("s_cselect_b32 s27, 0, 1")
    k.e(f"s_cselect_b32 s26, 0, {WS['v']-WS['k']:#x}")
    k.e(f"s_add_u32 s26, s26, {WS['k']:#x}")
    k.e("s_and_b32 s44, s44, 15")
    k.e("s_lshl_b32 s46, s44, 9")
    k.e(f"s_sub_u32 s47, {512*8192}, s46")
    mk_srd(k, 8, 36, off_sgpr=46, size_sgpr=47)
    k.e(f"s_mul_i32 s47, s45, {256*8192}")
    k.e("s_add_u32 s46, s46, s47")
    k.e(f"s_lshl_b32 s47, s44, 20")
    k.e(f"s_lshl_b32 s48, s45, 9")
    k.e("s_add_u32 s47, s47, s48")
    k.e("s_cmp_eq_u32 s27, 0")
    k.e("s_cselect_b32 s46, s46, s47")
    k.e(f"s_sub_u32 s47, {SZ_KV}, s46")
    k.e("s_add_u32 s46, s46, s26")
    mk_srd(k, 12, 40, off_sgpr=46, size_sgpr=47)

PF = "p" in __import__("os").environ.get("VAR", "aph")
def k1_hook(k, va, phase, ndma=0):
    if phase == "post":
        if not PF: return 0
        st = k1_hook.st
        if "pf" not in st:
            st["pf"] = va.get(4, 4)
        k.e("s_lshl_b32 s44, s2, 3")
        k.e("s_add_u32 s44, s44, s20")
        k.e("s_mul_i32 s44, s44, 3072")
        k.e(f"v_and_b32 v{st['vo']}, 63, v0")
        k.e(f"v_lshlrev_b32 v{st['vo']}, 4, v{st['vo']}")
        mk_srd(k, 16, 56, size=576 * 8192)
        for j in range(3):
            k.e(f"buffer_load_dwordx4 {vr(st['pf'],4)}, v{st['vo']}, s[16:19], s44 offen offset:{1024*j}")
        if "q" in __import__("os").environ.get("VAR", ""):
            k.e(f"s_load_dwordx4 s[36:39], s[0:1], {KA['wuk']}")
            k.e("s_lshl_b32 s44, s2, 3")
            k.e("s_add_u32 s44, s44, s20")
            k.e("s_mul_i32 s44, s44, 1536")
            k.e(f"s_add_u32 s44, s44, {128*8192}")
            k.e("s_waitcnt lgkmcnt(0)")
            for p in (36, 38):
                mk_srd(k, 16, p, size=512 * 8192)
                for j in range(2):
                    k.e(f"buffer_load_dwordx4 {vr(st['pf'],4)}, v{st['vo']}, s[16:19], s44 offen offset:{512*j}")
        return 0
    if phase == "load":
        st = {}
        k1_hook.st = st
        k.e("s_lshl_b32 s44, s2, 3")
        k.e("s_add_u32 s44, s44, s20")
        k.e("s_mul_i32 s44, s44, 1152")
        mk_srd(k, 16, 42, off_sgpr=44, size=1152)
        st["vo"] = va.get(); st["raw"] = va.get(6, 2)
        k.e(f"v_and_b32 v{st['vo']}, 63, v0")
        k.e(f"v_lshlrev_b32 v{st['vo']}, 3, v{st['vo']}")
        k.e(f"v_cmp_gt_u32 vcc, 384, v{st['vo']}")
        k.e("s_mov_b64 s[46:47], vcc")
        k.e("s_mov_b64 exec, vcc")
        for i in range(3):
            k.e(f"buffer_load_dwordx2 {vr(st['raw']+2*i,2)}, v{st['vo']}, s[16:19], 0 offen offset:{384*i}")
        k.e("s_mov_b64 exec, -1")
        return 0
    st = k1_hook.st
    save = va.n
    X = [va.get() for _ in range(12)]
    k.e(f"s_waitcnt vmcnt({ndma})")
    k.e("s_mov_b64 exec, s[46:47]")
    for i in range(6):
        k.e(f"v_lshlrev_b32 v{X[2*i]}, 16, v{st['raw']+i}")
        k.e(f"v_and_b32 v{X[2*i+1]}, 0xffff0000, v{st['raw']+i}")
    layernorm12(k, X, va, 46)
    for i in range(6):
        k.e(f"v_cvt_pk_bf16_f32 v{st['raw']+i}, v{X[2*i]}, v{X[2*i+1]}")
    mk_srd(k, 16, 40, off_sgpr=44, off_imm=WS['xn'], size=1152) if WS['xn'] else mk_srd(k, 16, 40, off_sgpr=44, size=1152)
    for i in range(3):
        k.e(f"buffer_store_dwordx2 {vr(st['raw']+2*i,2)}, v{st['vo']}, s[16:19], 0 offen offset:{384*i}")
    k.e("s_mov_b64 exec, -1")
    va.n = save
    return 3

def epi_kv(env, keep):
    k = env["k"]; vl = env["vl"]; q = env["q"]; vt = env["vt"]; vt2 = env["vt2"]; accr = env["accr"]
    TM, TN = env["TM"], env["TN"]
    k.e(f"v_and_b32 v{vt}, 15, v{vl}")
    k.e(f"v_lshlrev_b32 v{vt}, 13, v{vt}")
    k.e(f"v_lshl_add_u32 v{vt}, v{q}, 4, v{vt}")
    k.e(f"s_mul_i32 s28, s{env['SWM']}, {TM*16*8192}")
    k.e(f"s_mul_i32 s29, s{env['SWN']}, {TN*32}")
    k.e("s_add_u32 s28, s28, s29")
    k.e(f"v_add_u32 v{vt}, s28, v{vt}")
    for mi in keep:
        k.e(f"s_mov_b32 s28, {mi*16*8192:#x}")
        for pt in range(TN // 2):
            a = accr(mi, 2 * pt); b = accr(mi, 2 * pt + 1)
            k.e(f"v_cvt_pk_bf16_f32 v{a}, v{a}, v{a+1}")
            k.e(f"v_cvt_pk_bf16_f32 v{a+1}, v{a+2}, v{a+3}")
            k.e(f"v_cvt_pk_bf16_f32 v{a+2}, v{b}, v{b+1}")
            k.e(f"v_cvt_pk_bf16_f32 v{a+3}, v{b+2}, v{b+3}")
            k.e(f"buffer_store_dwordx4 {vr(a,4)}, v{vt}, s[12:15], s28 offen offset:{64*pt}")

def epi_vt(env, keep):
    k = env["k"]; vl = env["vl"]; q = env["q"]; vt = env["vt"]; accr = env["accr"]
    TM, TN = env["TM"], env["TN"]
    k.e(f"v_and_b32 v{vt}, 15, v{vl}")
    k.e(f"v_lshlrev_b32 v{vt}, 12, v{vt}")
    k.e(f"v_lshl_add_u32 v{vt}, v{q}, 4, v{vt}")
    k.e(f"s_mul_i32 s28, s{env['SWN']}, {TN*16*4096}")
    k.e(f"s_mul_i32 s29, s{env['SWM']}, {TM*32}")
    k.e("s_add_u32 s28, s28, s29")
    k.e(f"v_add_u32 v{vt}, s28, v{vt}")
    for ti in range(TN):
        k.e(f"s_mov_b32 s28, {ti*16*4096:#x}")
        for pm in range(TM // 2):
            a = accr(2 * pm, ti); b = accr(2 * pm + 1, ti)
            k.e(f"v_cvt_pk_bf16_f32 v{a}, v{a}, v{a+1}")
            k.e(f"v_cvt_pk_bf16_f32 v{a+1}, v{a+2}, v{a+3}")
            k.e(f"v_cvt_pk_bf16_f32 v{a+2}, v{b}, v{b+1}")
            k.e(f"v_cvt_pk_bf16_f32 v{a+3}, v{b+2}, v{b+3}")
            k.e(f"buffer_store_dwordx4 {vr(a,4)}, v{vt}, s[12:15], s28 offen offset:{64*pm}")

def mk_splitk_map(xname, ldx, wname, ksl, pname, p16=False):
    def f(k):
        k.e(f"s_load_dwordx2 s[36:37], s[0:1], {KA[wname]}")
        k.e(f"s_load_dwordx2 s[40:41], s[0:1], {KA['ws']}")
        k.e("s_and_b32 s44, s2, 7")
        k.e("s_lshr_b32 s45, s2, 3")
        k.e("s_and_b32 s42, s45, 3")
        k.e("s_lshr_b32 s45, s45, 2")
        k.e("s_and_b32 s46, s44, 1")
        k.e("s_lshl_b32 s46, s46, 3")
        k.e("s_add_u32 s45, s45, s46")
        k.e("s_lshr_b32 s43, s44, 1")
        k.e("s_waitcnt lgkmcnt(0)")
        k.e(f"s_mul_i32 s46, s45, {128*ldx}")
        k.e(f"s_mul_i32 s47, s43, {ksl*2}")
        k.e("s_add_u32 s46, s46, s47")
        k.e(f"s_sub_u32 s47, {2048*ldx}, s46")
        mk_srd(k, 4, 40, off_sgpr=46, off_imm=WS[xname], size_sgpr=47)
        k.e(f"s_mul_i32 s46, s43, {ksl*1152}")
        k.e("s_mul_i32 s47, s42, 288")
        k.e("s_add_u32 s46, s46, s47")
        k.e(f"s_sub_u32 s47, {ksl*4*1152}, s46")
        mk_srd(k, 8, 36, off_sgpr=46, size_sgpr=47)
        if p16:
            k.e("s_and_b32 s26, s42, 1")
            k.e(f"s_mul_i32 s46, s43, {SZ_PART//2}")
            k.e(f"s_mul_i32 s47, s45, {128*1152}")
            k.e("s_add_u32 s46, s46, s47")
            k.e("s_mul_i32 s47, s42, 288")
            k.e("s_and_b32 s47, s47, 0xffffffc0")
            k.e("s_add_u32 s46, s46, s47")
            k.e(f"s_sub_u32 s47, {2*SZ_PART}, s46")
        else:
            k.e(f"s_mul_i32 s46, s43, {SZ_PART}")
            k.e(f"s_mul_i32 s47, s45, {128*2304}")
            k.e("s_add_u32 s46, s46, s47")
            k.e("s_mul_i32 s47, s42, 576")
            k.e("s_add_u32 s46, s46, s47")
            k.e(f"s_sub_u32 s47, {4*SZ_PART}, s46")
        mk_srd(k, 12, 40, off_sgpr=46, off_imm=WS[pname], size_sgpr=47)
    return f

def mk_splitk8_map(xname, ldx, wname, ksl, pname):
    def f(k):
        k.e(f"s_load_dwordx2 s[36:37], s[0:1], {KA[wname]}")
        k.e(f"s_load_dwordx2 s[40:41], s[0:1], {KA['ws']}")
        k.e("s_and_b32 s43, s2, 7")
        k.e("s_lshr_b32 s45, s2, 3")
        k.e("s_and_b32 s42, s45, 3")
        k.e("s_lshr_b32 s45, s45, 2")
        k.e("s_and_b32 s26, s42, 1")
        k.e("s_waitcnt lgkmcnt(0)")
        k.e(f"s_mul_i32 s46, s45, {256*ldx}")
        k.e(f"s_mul_i32 s47, s43, {ksl*2}")
        k.e("s_add_u32 s46, s46, s47")
        k.e(f"s_sub_u32 s47, {2048*ldx}, s46")
        mk_srd(k, 4, 40, off_sgpr=46, off_imm=WS[xname], size_sgpr=47)
        k.e(f"s_mul_i32 s46, s43, {ksl*1152}")
        k.e("s_mul_i32 s47, s42, 288")
        k.e("s_add_u32 s46, s46, s47")
        k.e(f"s_sub_u32 s47, {ksl*8*1152}, s46")
        mk_srd(k, 8, 36, off_sgpr=46, size_sgpr=47)
        k.e(f"s_mul_i32 s46, s43, {SZ_PART//2}")
        k.e(f"s_mul_i32 s47, s45, {256*1152}")
        k.e("s_add_u32 s46, s46, s47")
        k.e("s_mul_i32 s47, s42, 288")
        k.e("s_and_b32 s47, s47, 0xffffffc0")
        k.e("s_add_u32 s46, s46, s47")
        k.e(f"s_sub_u32 s47, {4*SZ_PART}, s46")
        mk_srd(k, 12, 40, off_sgpr=46, off_imm=WS[pname], size_sgpr=47)
    return f

def store_s32(env, keep, ld):
    k = env["k"]; vl = env["vl"]; q = env["q"]; vt = env["vt"]; accr = env["accr"]
    TM, TN = env["TM"], env["TN"]
    k.e(f"v_and_b32 v{vt}, 15, v{vl}")
    k.e(f"v_mul_u32_u24 v{vt}, {ld}, v{vt}")
    k.e(f"v_lshl_add_u32 v{vt}, v{q}, 4, v{vt}")
    k.e(f"s_mul_i32 s28, s{env['SWM']}, {TM*16*ld}")
    k.e(f"v_add_u32 v{vt}, s28, v{vt}")
    lo = k.newlab("odd"); lj = k.newlab("join")
    k.e("s_cmp_eq_u32 s26, 0")
    k.e(f"s_cbranch_scc0 {lo}")
    for par in range(2):
        if par: k.lab(lo)
        for mi in keep:
            k.e(f"s_mov_b32 s28, {mi*16*ld:#x}")
            t = 0
            while t < TN:
                g = (t + par) >> 1; e = (t + par) & 1
                a = accr(mi, t)
                if e == 0 and t + 1 < TN:
                    bb = accr(mi, t + 1)
                    k.e(f"v_cvt_pk_bf16_f32 v{a}, v{a}, v{a+1}")
                    k.e(f"v_cvt_pk_bf16_f32 v{a+1}, v{a+2}, v{a+3}")
                    k.e(f"v_cvt_pk_bf16_f32 v{a+2}, v{bb}, v{bb+1}")
                    k.e(f"v_cvt_pk_bf16_f32 v{a+3}, v{bb+2}, v{bb+3}")
                    k.e(f"buffer_store_dwordx4 {vr(a,4)}, v{vt}, s[12:15], s28 offen offset:{64*g}")
                    t += 2
                else:
                    k.e(f"v_cvt_pk_bf16_f32 v{a}, v{a}, v{a+1}")
                    k.e(f"v_cvt_pk_bf16_f32 v{a+1}, v{a+2}, v{a+3}")
                    k.e(f"buffer_store_dwordx2 {vr(a,2)}, v{vt}, s[12:15], s28 offen offset:{64*g+8*e}")
                    t += 1
        if par == 0:
            k.e(f"s_branch {lj}")
    k.lab(lj)

def epi_part16(env, keep):
    store_s32(env, keep, 1152)

def epi_part(env, keep):
    k = env["k"]; vl = env["vl"]; q = env["q"]; vt = env["vt"]; accr = env["accr"]
    TM, TN = env["TM"], env["TN"]
    k.e(f"v_and_b32 v{vt}, 15, v{vl}")
    k.e(f"v_mul_u32_u24 v{vt}, 2304, v{vt}")
    k.e(f"v_lshl_add_u32 v{vt}, v{q}, 4, v{vt}")
    k.e(f"s_mul_i32 s28, s{env['SWM']}, {TM*16*2304}")
    k.e(f"v_add_u32 v{vt}, s28, v{vt}")
    for mi in keep:
        k.e(f"s_mov_b32 s28, {mi*16*2304:#x}")
        for t in range(TN):
            k.e(f"buffer_store_dwordx4 {vr(accr(mi,t),4)}, v{vt}, s[12:15], s28 offen offset:{64*t}")

def k5_map(k):
    k.e(f"s_load_dwordx4 s[36:39], s[0:1], {KA['w1']}")
    k.e(f"s_load_dwordx2 s[40:41], s[0:1], {KA['ws']}")
    k.e("s_and_b32 s44, s2, 7")
    k.e("s_lshr_b32 s45, s2, 3")
    k.e("s_and_b32 s46, s45, 3")
    k.e("s_lshl_b32 s44, s44, 2")
    k.e("s_add_u32 s44, s44, s46")
    k.e("s_lshr_b32 s45, s45, 2")
    k.e("s_and_b32 s26, s44, 1")
    k.e("s_waitcnt lgkmcnt(0)")
    k.e(f"s_mul_i32 s46, s45, {256*1152}")
    k.e(f"s_sub_u32 s47, {2048*1152}, s46")
    mk_srd(k, 4, 40, off_sgpr=46, off_imm=WS['hn'], size_sgpr=47)
    k.e("s_mul_i32 s46, s44, 288")
    k.e(f"s_sub_u32 s47, {576*9216}, s46")
    mk_srd(k, 8, 36, off_sgpr=46, size_sgpr=47)
    k.e(f"s_sub_u32 s47, {4608*2}, s46")
    mk_srd(k, 16, 38, off_sgpr=46, size_sgpr=47)
    k.e("s_and_b32 s46, s46, 0xffffffc0")
    k.e(f"s_mul_i32 s47, s45, {256*9216}")
    k.e("s_add_u32 s46, s46, s47")
    k.e(f"s_sub_u32 s47, {SZ_ACT}, s46")
    mk_srd(k, 12, 40, off_sgpr=46, off_imm=WS['act'], size_sgpr=47)

def k5_hook(k, va, phase, ndma=0):
    if phase == "load":
        k5_hook.b = va.get(18, 2); k5_hook.t = va.get()
        return 0
    if phase == "post":
        b = k5_hook.b; t = k5_hook.t
        k.e(f"v_bfe_u32 v{t}, v0, 4, 2")
        k.e(f"v_lshlrev_b32 v{t}, 3, v{t}")
        for i in range(9):
            k.e(f"buffer_load_dwordx2 {vr(b+2*i,2)}, v{t}, s[16:19], 0 offen offset:{32*i}")
        return 0
    return 0

def epi_act(env, keep):
    k = env["k"]; vl = env["vl"]; q = env["q"]; vt = env["vt"]; vt2 = env["vt2"]; vt3 = env["vt3"]; accr = env["accr"]
    TM, TN = env["TM"], env["TN"]
    b = k5_hook.b
    k.e(f"v_and_b32 v{vt}, 15, v{vl}")
    k.e(f"v_mul_u32_u24 v{vt}, 9216, v{vt}")
    k.e(f"v_lshl_add_u32 v{vt}, v{q}, 4, v{vt}")
    k.e(f"s_mul_i32 s28, s{env['SWM']}, {TM*16*9216}")
    k.e(f"v_add_u32 v{vt}, s28, v{vt}")
    for t in range(TN):
        for h in range(2):
            k.e(f"v_lshlrev_b32 v{vt2}, 16, v{b+2*t+h}")
            k.e(f"v_and_b32 v{vt3}, 0xffff0000, v{b+2*t+h}")
            for mi in keep:
                a = accr(mi, t) + 2 * h
                k.e(f"v_add_f32 v{a}, v{a}, v{vt2}")
                k.e(f"v_add_f32 v{a+1}, v{a+1}, v{vt3}")
                k.e(f"v_max_f32 v{a}, 0, v{a}")
                k.e(f"v_max_f32 v{a+1}, 0, v{a+1}")
                k.e(f"v_mul_f32 v{a}, v{a}, v{a}")
                k.e(f"v_mul_f32 v{a+1}, v{a+1}, v{a+1}")
    lo = k.newlab("odd"); lj = k.newlab("join")
    k.e("s_cmp_eq_u32 s26, 0")
    k.e(f"s_cbranch_scc0 {lo}")
    for par in range(2):
        if par: k.lab(lo)
        for mi in keep:
            k.e(f"s_mov_b32 s28, {mi*16*9216:#x}")
            t = 0
            while t < TN:
                g = (t + par) >> 1; e = (t + par) & 1
                a = accr(mi, t)
                if e == 0 and t + 1 < TN:
                    bb = accr(mi, t + 1)
                    k.e(f"v_cvt_pk_bf16_f32 v{a}, v{a}, v{a+1}")
                    k.e(f"v_cvt_pk_bf16_f32 v{a+1}, v{a+2}, v{a+3}")
                    k.e(f"v_cvt_pk_bf16_f32 v{a+2}, v{bb}, v{bb+1}")
                    k.e(f"v_cvt_pk_bf16_f32 v{a+3}, v{bb+2}, v{bb+3}")
                    k.e(f"buffer_store_dwordx4 {vr(a,4)}, v{vt}, s[12:15], s28 offen offset:{64*g}")
                    t += 2
                else:
                    k.e(f"v_cvt_pk_bf16_f32 v{a}, v{a}, v{a+1}")
                    k.e(f"v_cvt_pk_bf16_f32 v{a+1}, v{a+2}, v{a+3}")
                    k.e(f"buffer_store_dwordx2 {vr(a,2)}, v{vt}, s[12:15], s28 offen offset:{64*g+8*e}")
                    t += 1
        if par == 0:
            k.e(f"s_branch {lj}")
    k.lab(lj)

def gen_reduce(name, S, pname, final):
    k = Kern(name); k.uses(48)
    lend = name + "_end"
    k.e("s_cmp_ge_u32 s2, 256")
    k.e(f"s_cbranch_scc1 {lend}")
    va = VAlloc(k, 1)
    vo = va.get(); vo2 = va.get(); vt = va.get()
    k.e(f"v_lshrrev_b32 v{vt}, 6, v0")
    k.e(f"s_load_dwordx2 s[40:41], s[0:1], {KA['ws']}")
    k.e(f"s_load_dwordx2 s[42:43], s[0:1], {KA['x']}")
    k.e(f"s_load_dwordx2 s[44:45], s[0:1], {KA['b2']}")
    k.e(f"s_load_dwordx2 s[36:37], s[0:1], {KA['out']}")
    k.e(f"v_readfirstlane_b32 s20, v{vt}")
    k.e("s_lshl_b32 s21, s2, 3")
    k.e("s_add_u32 s21, s21, s20")
    k.e("s_mul_i32 s22, s21, 1152")
    k.e("s_mul_i32 s23, s21, 2304")
    k.e(f"v_and_b32 v{vo}, 63, v0")
    k.e(f"v_lshlrev_b32 v{vo2}, 3, v{vo}")
    k.e(f"v_lshlrev_b32 v{vo}, 4, v{vo}")
    k.e(f"v_cmp_gt_u32 vcc, 384, v{vo2}")
    k.e("s_mov_b64 s[46:47], vcc")
    k.e("s_waitcnt lgkmcnt(0)")
    k.e(f"s_sub_u32 s24, {S*SZ_PART}, s23")
    mk_srd(k, 4, 40, off_sgpr=23, off_imm=WS[pname], size_sgpr=24)
    if final:
        mk_srd(k, 8, 40, off_sgpr=22, off_imm=WS['h'], size=1152)
        mk_srd(k, 12, 36, off_sgpr=22, size=1152)
        mk_srd(k, 16, 44, size=1152)
    else:
        mk_srd(k, 8, 42, off_sgpr=22, size=1152)
        mk_srd(k, 12, 40, off_sgpr=22, off_imm=WS['h'], size=1152)
        mk_srd(k, 16, 40, off_sgpr=22, off_imm=WS['hn'], size=1152)
    k.e("s_mov_b64 exec, s[46:47]")
    P = va.get(12 * S, 4)
    R = va.get(6, 2)
    B = va.get(6, 2)
    for s in range(S):
        k.e(f"s_mov_b32 s25, {s*SZ_PART:#x}")
        for i in range(3):
            k.e(f"buffer_load_dwordx4 {vr(P+12*s+4*i,4)}, v{vo}, s[4:7], s25 offen offset:{768*i}")
    for i in range(3):
        k.e(f"buffer_load_dwordx2 {vr(R+2*i,2)}, v{vo2}, s[8:11], 0 offen offset:{384*i}")
    if final:
        for i in range(3):
            k.e(f"buffer_load_dwordx2 {vr(B+2*i,2)}, v{vo2}, s[16:19], 0 offen offset:{384*i}")
    nrest = 3 + (3 if final else 0)
    for s in range(1, S):
        k.e(f"s_waitcnt vmcnt({nrest + 3*(S-1-s)})")
        for j in range(12):
            k.e(f"v_add_f32 v{P+j}, v{P+j}, v{P+12*s+j}")
    k.e("s_waitcnt vmcnt(0)")
    X = [P + j for j in range(12)]
    t0 = va.get(); t1 = va.get()
    for i in range(6):
        a, b = X[2 * i], X[2 * i + 1]
        bf16_round(k, a); bf16_round(k, b)
        if final:
            k.e(f"v_lshlrev_b32 v{t0}, 16, v{B+i}")
            k.e(f"v_and_b32 v{t1}, 0xffff0000, v{B+i}")
            k.e(f"v_add_f32 v{a}, v{a}, v{t0}")
            k.e(f"v_add_f32 v{b}, v{b}, v{t1}")
            bf16_round(k, a); bf16_round(k, b)
        k.e(f"v_lshlrev_b32 v{t0}, 16, v{R+i}")
        k.e(f"v_and_b32 v{t1}, 0xffff0000, v{R+i}")
        k.e(f"v_add_f32 v{a}, v{a}, v{t0}")
        k.e(f"v_add_f32 v{b}, v{b}, v{t1}")
        k.e(f"v_cvt_pk_bf16_f32 v{R+i}, v{a}, v{b}")
    for i in range(3):
        k.e(f"buffer_store_dwordx2 {vr(R+2*i,2)}, v{vo2}, s[12:15], 0 offen offset:{384*i}")
    if not final:
        for i in range(6):
            k.e(f"v_lshlrev_b32 v{X[2*i]}, 16, v{R+i}")
            k.e(f"v_and_b32 v{X[2*i+1]}, 0xffff0000, v{R+i}")
        layernorm12(k, X, va, 46)
        for i in range(6):
            k.e(f"v_cvt_pk_bf16_f32 v{B+i}, v{X[2*i]}, v{X[2*i+1]}")
        for i in range(3):
            k.e(f"buffer_store_dwordx2 {vr(B+2*i,2)}, v{vo2}, s[16:19], 0 offen offset:{384*i}")
    k.lab(lend)
    k.e("s_endpgm")
    return k, 0


def gen_reduce16(name, S, pname, final):
    k = Kern(name); k.uses(48)
    lend = name + "_end"
    k.e("s_cmp_ge_u32 s2, 256")
    k.e(f"s_cbranch_scc1 {lend}")
    va = VAlloc(k, 1)
    vo = va.get(); vn = [va.get(), va.get()]; vt = va.get(); vt2 = va.get()
    k.e(f"v_lshrrev_b32 v{vt}, 6, v0")
    k.e(f"s_load_dwordx2 s[40:41], s[0:1], {KA['ws']}")
    k.e(f"s_load_dwordx2 s[42:43], s[0:1], {KA['x']}")
    k.e(f"s_load_dwordx2 s[44:45], s[0:1], {KA['b2']}")
    k.e(f"s_load_dwordx2 s[36:37], s[0:1], {KA['out']}")
    k.e(f"v_readfirstlane_b32 s20, v{vt}")
    k.e("s_lshl_b32 s21, s2, 3")
    k.e("s_add_u32 s21, s21, s20")
    k.e("s_mul_i32 s22, s21, 1152")
    k.e(f"v_and_b32 v{vo}, 63, v0")
    k.e(f"v_cmp_gt_u32 vcc, 36, v{vo}")
    k.e("s_mov_b64 s[46:47], vcc")
    for j in range(2):
        k.e(f"v_add_u32 v{vt}, {36*j}, v{vo}")
        k.e(f"v_lshrrev_b32 v{vt2}, 2, v{vt}")
        k.e(f"v_and_b32 v{vt}, 3, v{vt}")
        k.e(f"v_lshlrev_b32 v{vt}, 3, v{vt}")
        k.e(f"v_lshl_add_u32 v{vn[j]}, v{vt2}, 6, v{vt}")
    k.e(f"v_lshlrev_b32 v{vo}, 4, v{vo}")
    k.e("s_waitcnt lgkmcnt(0)")
    k.e(f"s_sub_u32 s24, {S*SZ_PART//2}, s22")
    mk_srd(k, 4, 40, off_sgpr=22, off_imm=WS[pname], size_sgpr=24)
    if final:
        mk_srd(k, 8, 40, off_sgpr=22, off_imm=WS['h'], size=1152)
        mk_srd(k, 12, 36, off_sgpr=22, size=1152)
        mk_srd(k, 16, 44, size=1152)
    else:
        mk_srd(k, 8, 42, off_sgpr=22, size=1152)
        mk_srd(k, 12, 40, off_sgpr=22, off_imm=WS['h'], size=1152)
        mk_srd(k, 16, 40, off_sgpr=22, off_imm=WS['hn'], size=1152)
    k.e("s_mov_b64 exec, s[46:47]")
    P = va.get(8 * S, 4)
    R = va.get(8, 2)
    B = va.get(8, 2)
    X = [va.get() for _ in range(16)]
    for s in range(S):
        k.e(f"s_mov_b32 s25, {s*SZ_PART//2:#x}")
        for j in range(2):
            k.e(f"buffer_load_dwordx4 {vr(P+8*s+4*j,4)}, v{vo}, s[4:7], s25 offen offset:{576*j}")
    for j in range(2):
        for hf in range(2):
            k.e(f"buffer_load_dwordx2 {vr(R+4*j+2*hf,2)}, v{vn[j]}, s[8:11], 0 offen offset:{32*hf}")
    if final:
        for j in range(2):
            for hf in range(2):
                k.e(f"buffer_load_dwordx2 {vr(B+4*j+2*hf,2)}, v{vn[j]}, s[16:19], 0 offen offset:{32*hf}")
    nrest = 4 + (4 if final else 0)
    t0 = va.get(); t1 = va.get()
    for s in range(S):
        k.e(f"s_waitcnt vmcnt({nrest + 2*(S-1-s)})")
        for i in range(8):
            if s == 0:
                k.e(f"v_lshlrev_b32 v{X[2*i]}, 16, v{P+i}")
                k.e(f"v_and_b32 v{X[2*i+1]}, 0xffff0000, v{P+i}")
            else:
                k.e(f"v_lshlrev_b32 v{t0}, 16, v{P+8*s+i}")
                k.e(f"v_and_b32 v{t1}, 0xffff0000, v{P+8*s+i}")
                k.e(f"v_add_f32 v{X[2*i]}, v{X[2*i]}, v{t0}")
                k.e(f"v_add_f32 v{X[2*i+1]}, v{X[2*i+1]}, v{t1}")
    k.e("s_waitcnt vmcnt(0)")
    for i in range(8):
        a, b = X[2 * i], X[2 * i + 1]
        bf16_round(k, a); bf16_round(k, b)
        if final:
            k.e(f"v_lshlrev_b32 v{t0}, 16, v{B+i}")
            k.e(f"v_and_b32 v{t1}, 0xffff0000, v{B+i}")
            k.e(f"v_add_f32 v{a}, v{a}, v{t0}")
            k.e(f"v_add_f32 v{b}, v{b}, v{t1}")
            bf16_round(k, a); bf16_round(k, b)
        k.e(f"v_lshlrev_b32 v{t0}, 16, v{R+i}")
        k.e(f"v_and_b32 v{t1}, 0xffff0000, v{R+i}")
        k.e(f"v_add_f32 v{a}, v{a}, v{t0}")
        k.e(f"v_add_f32 v{b}, v{b}, v{t1}")
        k.e(f"v_cvt_pk_bf16_f32 v{R+i}, v{a}, v{b}")
    for j in range(2):
        for hf in range(2):
            k.e(f"buffer_store_dwordx2 {vr(R+4*j+2*hf,2)}, v{vn[j]}, s[12:15], 0 offen offset:{32*hf}")
    if not final:
        for i in range(8):
            k.e(f"v_lshlrev_b32 v{X[2*i]}, 16, v{R+i}")
            k.e(f"v_and_b32 v{X[2*i+1]}, 0xffff0000, v{R+i}")
        layernorm12(k, X, va, 46)
        for i in range(8):
            k.e(f"v_cvt_pk_bf16_f32 v{B+i}, v{X[2*i]}, v{X[2*i+1]}")
        for j in range(2):
            for hf in range(2):
                k.e(f"buffer_store_dwordx2 {vr(B+4*j+2*hf,2)}, v{vn[j]}, s[16:19], 0 offen offset:{32*hf}")
    k.lab(lend)
    k.e("s_endpgm")
    return k, 0
```

```python
import sys, json
from gen_common import *
from gen_gemm import gen_gemm
from gen_kernels import *
try:
    from gen_attn import gen_attn
except ImportError:
    gen_attn = None

def build(opts):
    import os
    V = os.environ.get("VAR", "aph")
    ks = []
    k1, l1 = gen_gemm("kvproj_kernel", 256, 256, 2, 4, 1, ((2, 3) if "k" in V else 2), 8, 256, k1_map, "nat", epi_kv, 1024, 8192, pre_hook=k1_hook, epi_alt=epi_vt, DSP=(4 if "d" in V else 1))
    ks.append((k1, l1, 256, 512))
    if gen_attn:
        k2, l2 = gen_attn("attn_kernel")
        ks.append((k2, l2, 256, 512))
    k3, l3 = gen_gemm("oproj_kernel", 128, 144, *((8, 1, 1) if "b" in V else (4, 1, 2)), (4 if "n" in V else 3), 16, 256, mk_splitk_map("ctx", 8192, "wo", 1024, "p1", "h" in V), "s32", (epi_part16 if "h" in V else epi_part), 8192, 1152, DSP=(2 if "d" in V else 1))
    if "g" in V:
        k3, l3 = gen_gemm("oproj_kernel", 256, 144, 8, 1, 1, 3, 8, 256, mk_splitk8_map("ctx", 8192, "wo", 512, "p1"), "s32", epi_part16, 8192, 1152)
    ks.append((k3, l3, 256, 512))
    k4, l4 = (gen_reduce16 if "h" in V else gen_reduce)("red1_kernel", 4, "p1", False)
    if "g" in V:
        k4, l4 = gen_reduce16("red1_kernel", 8, "p1", False)
    ks.append((k4, l4, 256, 512))
    k5, l5 = gen_gemm("ffn1_kernel", 256, 144, *((8, 1, 1) if "a" in V else (4, 1, 2)), 3, 9, 256, k5_map, "nat", epi_act, 1152, 9216, pre_hook=k5_hook, DSP=(3 if "d" in V else 1))
    ks.append((k5, l5, 256, 512))
    k6, l6 = gen_gemm("ffn2_kernel", 128, 144, *((8, 1, 1) if "b" in V else (4, 1, 2)), (4 if "n" in V else 3), 18, 256, mk_splitk_map("act", 9216, "w2", 1152, "p2", "h" in V), "s32", (epi_part16 if "h" in V else epi_part), 9216, 1152, DSP=(2 if "d" in V else 1))
    if "g" in V:
        k6, l6 = gen_gemm("ffn2_kernel", 256, 144, 8, 1, 1, 3, 9, 256, mk_splitk8_map("act", 9216, "w2", 576, "p2"), "s32", epi_part16, 9216, 1152)
    ks.append((k6, l6, 256, 512))
    k7, l7 = (gen_reduce16 if "h" in V else gen_reduce)("red2_kernel", 4, "p2", True)
    if "g" in V:
        k7, l7 = gen_reduce16("red2_kernel", 8, "p2", True)
    ks.append((k7, l7, 256, 512))
    return ks

def main():
    out = sys.argv[1] if len(sys.argv) > 1 else f"cdna_kernels/{NAME}.s"
    ks = build({})
    hdr = open(f"cdna_kernels/{NAME}.s.ref").read().split("\n")
    lines = [l for l in hdr if l.startswith(";") and "@launch" not in l and "Override launch" not in l and "grid=ceil" not in l]
    txt = "\n".join(lines[:16]) + "\n"
    for k, lds, g, b in ks:
        txt += f"; @launch kernel={k.name} grid=({g},1,1) block=({b},1,1) lds={lds}\n"
    txt += '.amdgcn_target "amdgcn-amd-amdhsa--gfx950"\n.text\n'
    for k, *_ in ks:
        txt += k.text()
    txt += '.section .rodata,"a"\n'
    for k, *_ in ks:
        txt += k.desc()
    import os, re
    sf = os.environ.get("STFLAG", "sc1")
    if sf:
        txt = re.sub(r"(buffer_store_dwordx[24] .*offen(?: offset:\d+)?)\n", lambda m: m.group(1) + " " + sf + "\n", txt)
    open(out, "w").write(txt)
    lay = {"xn": (WS["xn"], 2048, 576, "nat"), "k": (WS["k"], 2048, 4096, "s32"), "v": (WS["v"], 4096, 2048, "vt"),
           "ctx": (WS["ctx"], 2048, 4096, "s32"), "h": (WS["h"], 2048, 576, "nat"), "hn": (WS["hn"], 2048, 576, "nat"),
           "act": (WS["act"], 2048, 4608, "s32")}
    json.dump(lay, open("layout.json", "w"))
    for k, lds, g, b in ks:
        print(k.name, "vgpr", k.nv, "lds", lds, "instrs", len(k.L))
main()
```
